```python
import torch

def _softmax(x, axis=-1):
    return torch.softmax(x, dim=axis)
def _gelu(x):
    return torch.nn.functional.gelu(x, approximate="tanh")
def _silu(x):
    return torch.nn.functional.silu(x)
def _sigmoid(x):
    return torch.sigmoid(x)
def _layernorm(x, axis=-1, eps=1e-5):
    m = x.mean(dim=axis, keepdim=True)
    v = x.var(dim=axis, keepdim=True, unbiased=False)
    return (x - m) / torch.sqrt(v + eps)
def _scatter_add(tgt, idx, src, axis=0):
    return tgt.clone().index_add_(axis, idx, src)
def _segment_sum(src, seg, n):
    out = torch.zeros((n,) + src.shape[1:], dtype=src.dtype)
    return out.index_add_(0, seg, src)
def _pad(x, pw):
    flat = tuple(v for pair in reversed(pw) for v in pair)
    return torch.nn.functional.pad(x, flat)

kernel_name = 'standalone__gqa_softmax__near_ridge'

def setup_inputs():

    _w = (lambda a: (lambda t: t.to(torch.bfloat16) if t.is_floating_point() else t)(torch.as_tensor(a)))
    B, Hq, Hkv, Sq, Sk, D = 8, 32, 16, 160, 2048, 128
    return {
        "q": _w((lambda *s: torch.randn(*s, dtype=torch.bfloat16) * 0.8)(B, Hq, Sq, D)),
        "k": _w((lambda *s: torch.randn(*s, dtype=torch.bfloat16) * 0.8)(B, Hkv, Sk, D)),
        "v": _w((lambda *s: torch.randn(*s, dtype=torch.bfloat16) * 0.05)(B, Hkv, Sk, D)),
    }

def reference(q, k, v):
    B, Hq, Sq, D = q.shape
    Hkv = k.shape[1]
    rep = Hq // Hkv
    k = (lambda x, n, axis: torch.repeat_interleave(x, n, dim=axis))(k, rep, axis=1)
    v = (lambda x, n, axis: torch.repeat_interleave(x, n, dim=axis))(v, rep, axis=1)
    scale = D ** -0.5
    scores = torch.einsum("bhqd,bhkd->bhqk", q, k) * scale
    p = _softmax(scores, axis=-1)
    return torch.einsum("bhqk,bhkd->bhqd", p, v)
```

```python
import sys, math

NAME = "standalone__gqa_softmax__near_ridge_kernel"

class Cfg:
    kv_pol = ""
    q_pol = ""
    o_pol = ""
    stamps = False
    ntiles = 32
    U = 4
    R = 4
    force_slow = False
    lds = 131072
    rot = 0

def gen(cfg):
    L = []
    a = L.append
    V_OOWN = 0
    V_Q = 80
    V_NEGM = 160
    V_S = 180
    V_P = 196
    V_AK = 204
    V_AV = 208
    V_DV = 216
    V_T = 218
    V_LANE = 252
    V_QOFF = 253
    V_OOFF = 254
    V_X = 255
    A_OSND = 0
    A_L = 80
    A_KF = 100
    A_VF = 164
    A_ONE = 228
    S_W = 3
    SRD_K, SRD_V, SRD_Q, SRD_O = 12, 16, 20, 24
    S_TOFF = 28
    S_M0K = 32
    S_M0V = 36
    S_QT = 40
    S_CNT = 45
    S_J = 46
    S_I = 47
    S_C = 48
    S_HI = 50
    S_SLOW = 51
    S_BAD = 52
    S_T = 54
    S_J128 = 60

    def vq(qt, s): b = V_Q + (qt * 4 + s) * 4; return f"v[{b}:{b+3}]"
    def vnegm(qt): b = V_NEGM + qt * 4; return f"v[{b}:{b+3}]"
    def vS(buf, kt): b = V_S + buf * 8 + kt * 4; return f"v[{b}:{b+3}]"
    def vSr(buf, r): return f"v{V_S + buf * 8 + r}"
    def vP(buf): b = V_P + buf * 4; return f"v[{b}:{b+3}]"
    def vPr(buf, r): return f"v{V_P + buf * 4 + r}"
    def aKF(buf, kt, s): b = A_KF + buf * 32 + (kt * 4 + s) * 4; return f"a[{b}:{b+3}]"
    def aVF(buf, dt): b = A_VF + buf * 32 + dt * 4; return f"a[{b}:{b+3}]"
    def aVFh(buf, dt, kk): b = A_VF + buf * 32 + dt * 4 + kk * 2; return f"a[{b}:{b+1}]"
    def oacc(dt, qt):
        if dt < 4: b = V_OOWN + (qt * 4 + dt) * 4; return f"v[{b}:{b+3}]"
        b = A_OSND + (qt * 4 + dt - 4) * 4; return f"a[{b}:{b+3}]"
    def aL(qt): b = A_L + qt * 4; return f"a[{b}:{b+3}]"
    aONE = f"a[{A_ONE}:{A_ONE+3}]"
    MF = "v_mfma_f32_16x16x32_bf16"

    def mf_qk(kbuf, sbuf, qt, kt, s, cinit=None):
        c = vS(sbuf, kt) if s else (vnegm(qt) if cinit is None else cinit)
        return f"{MF} {vS(sbuf, kt)}, {aKF(kbuf, kt, s)}, {vq(qt, s)}, {c}"
    def mf_pv(vbuf, pbuf, qt, dt):
        return f"{MF} {oacc(dt, qt)}, {aVF(vbuf, dt)}, {vP(pbuf)}, {oacc(dt, qt)}"
    def mf_l(pbuf, qt):
        return f"{MF} {aL(qt)}, {aONE}, {vP(pbuf)}, {aL(qt)}"
    def rd_k(buf, slot, kt, s):
        return f"ds_read_b128 {aKF(buf, kt, s)}, v{V_AK + s} offset:{slot * 16384 + kt * 4096}"
    def rd_v(buf, slot, dt, kk):
        return f"ds_read_b64_tr_b16 {aVFh(buf, dt, kk)}, v{V_AV + dt} offset:{slot * 16384 + kk * 4096}"
    def dma(which, p):
        srd = SRD_K if which == 'k' else SRD_V
        pol = (" " + cfg.kv_pol) if cfg.kv_pol else ""
        return f"buffer_load_dwordx4 v{V_DV + (p & 1)}, s[{srd}:{srd+3}], s{S_TOFF} offen offset:{p * 1024}{pol} lds"
    def setm0(which, slot):
        return f"s_mov_b32 m0, s{(S_M0K if which == 'k' else S_M0V) + slot}"

    a("s_cmp_ge_u32 s2, 256")
    a("s_cbranch_scc1 L_done")
    a("s_load_dwordx4 s[4:7], s[0:1], 0")
    a("s_load_dwordx4 s[8:11], s[0:1], 16")
    if cfg.stamps:
        a("s_load_dwordx2 s[64:65], s[0:1], 40")
        a("s_memrealtime s[66:67]")
    a(f"v_lshrrev_b32 v{V_T}, 6, v0")
    a(f"v_and_b32 v{V_LANE}, 63, v0")
    a(f"v_readfirstlane_b32 s{S_W}, v{V_T}")
    t15, tg, t0, t1, t2, t3 = [f"v{V_T + k}" for k in range(1, 7)]
    a(f"v_and_b32 {t15}, 15, v{V_LANE}")
    a(f"v_lshrrev_b32 {tg}, 4, v{V_LANE}")
    a(f"s_lshr_b32 s{S_I}, s{S_W}, 1")
    a(f"s_and_b32 s{S_J}, s{S_W}, 1")
    a(f"s_lshr_b32 s{S_T}, s2, 4")
    a(f"s_lshl_b32 s{S_T}, s{S_T}, 3")
    a(f"s_and_b32 s{S_T+1}, s2, 7")
    a(f"s_add_u32 s{S_T}, s{S_T}, s{S_T+1}")
    a(f"s_lshr_b32 s{S_T+1}, s2, 3")
    a(f"s_and_b32 s{S_T+1}, s{S_T+1}, 1")
    a(f"s_lshl_b32 s{S_T+2}, s{S_T}, 1")
    a(f"s_add_u32 s{S_T+1}, s{S_T+2}, s{S_T+1}")
    a(f"s_mul_i32 s{S_T+1}, s{S_T+1}, 40960")
    a(f"s_mul_i32 s{S_T+2}, s{S_I}, 20480")
    a(f"s_add_u32 s{S_T+1}, s{S_T+1}, s{S_T+2}")
    a(f"s_lshl_b32 s{S_T}, s{S_T}, 19")
    a(f"v_lshlrev_b32 {t0}, 8, {t15}")
    a(f"v_lshl_add_u32 v{V_QOFF}, {tg}, 4, {t0}")
    a(f"v_lshlrev_b32 {t0}, 1, {tg}")
    a(f"v_xor_b32 {t0}, {t0}, {t15}")
    a(f"v_lshlrev_b32 {t0}, 4, {t0}")
    a(f"v_lshl_add_u32 v{V_DV}, {tg}, 8, {t0}")
    a(f"v_xor_b32 v{V_DV+1}, 128, v{V_DV}")
    for q in range(5): a(f"s_mov_b32 s{S_QT+q}, {q * 4096}")
    a(f"s_lshl_b32 s{S_TOFF}, s{S_W}, 12")
    for sl in range(cfg.R):
        a(f"s_add_u32 s{S_M0K+sl}, s{S_TOFF}, {sl * 16384}")
        a(f"s_add_u32 s{S_M0V+sl}, s{S_TOFF}, {65536 + sl * 16384}")
    a("s_waitcnt lgkmcnt(0)")
    a(f"s_add_u32 s{SRD_Q}, s4, s{S_T+1}"); a(f"s_addc_u32 s{SRD_Q+1}, s5, 0")
    a(f"s_and_b32 s{SRD_Q+1}, s{SRD_Q+1}, 0xffff")
    a(f"s_mov_b32 s{SRD_Q+2}, 20480"); a(f"s_mov_b32 s{SRD_Q+3}, 0x20000")
    pol = (" " + cfg.q_pol) if cfg.q_pol else ""
    for qt in range(5):
        for s in range(4):
            a(f"buffer_load_dwordx4 {vq(qt, s)}, v{V_QOFF}, s[{SRD_Q}:{SRD_Q+3}], s{S_QT+qt} offen offset:{s*64}{pol}")
    a(f"s_add_u32 s{SRD_K}, s6, s{S_T}"); a(f"s_addc_u32 s{SRD_K+1}, s7, 0")
    a(f"s_and_b32 s{SRD_K+1}, s{SRD_K+1}, 0xffff")
    a(f"s_mov_b32 s{SRD_K+2}, 524288"); a(f"s_mov_b32 s{SRD_K+3}, 0x20000")
    a(f"s_add_u32 s{SRD_V}, s8, s{S_T}"); a(f"s_addc_u32 s{SRD_V+1}, s9, 0")
    a(f"s_and_b32 s{SRD_V+1}, s{SRD_V+1}, 0xffff")
    a(f"s_mov_b32 s{SRD_V+2}, 524288"); a(f"s_mov_b32 s{SRD_V+3}, 0x20000")
    a(f"s_add_u32 s{SRD_O}, s10, s{S_T+1}"); a(f"s_addc_u32 s{SRD_O+1}, s11, 0")
    a(f"s_and_b32 s{SRD_O+1}, s{SRD_O+1}, 0xffff")
    a(f"s_mov_b32 s{SRD_O+2}, 20480"); a(f"s_mov_b32 s{SRD_O+3}, 0x20000")
    def issue_tile(slot, parts):
        for which in parts:
            a(setm0(which, slot)); a("s_nop 0")
            for p in range(4): a(dma(which, p))
    issue_tile(0, 'kv'); a(f"s_add_u32 s{S_TOFF}, s{S_TOFF}, 16384")
    issue_tile(1, 'kv'); a(f"s_add_u32 s{S_TOFF}, s{S_TOFF}, 16384")
    issue_tile(2, 'kv'); a(f"s_add_u32 s{S_TOFF}, s{S_TOFF}, 16384")
    issue_tile(3, 'k')
    a(f"s_lshl_b32 s{S_T}, s{S_J}, 13")
    a(f"v_and_b32 {t0}, 7, {t15}")
    a(f"v_lshlrev_b32 {t0}, 1, {t0}")
    a(f"v_xor_b32 {t0}, {t0}, {tg}")
    a(f"v_lshlrev_b32 {t0}, 4, {t0}")
    a(f"v_lshl_add_u32 {t0}, {t15}, 8, {t0}")
    a(f"v_add_u32 v{V_AK}, s{S_T}, {t0}")
    for s in range(1, 4): a(f"v_xor_b32 v{V_AK+s}, {s*64}, v{V_AK}")
    a(f"v_lshrrev_b32 {t0}, 2, {t15}")
    a(f"v_lshl_add_u32 {t0}, {tg}, 2, {t0}")
    a(f"v_and_b32 {t1}, 7, {t0}")
    a(f"v_lshlrev_b32 {t1}, 1, {t1}")
    a(f"v_bfe_u32 {t2}, {t15}, 1, 1")
    a(f"v_xor_b32 {t1}, {t1}, {t2}")
    a(f"v_lshlrev_b32 {t1}, 4, {t1}")
    a(f"v_lshl_add_u32 {t1}, {t0}, 8, {t1}")
    a(f"v_and_b32 {t2}, 1, {t15}")
    a(f"v_lshl_add_u32 {t1}, {t2}, 3, {t1}")
    a(f"s_lshl_b32 s{S_J128}, s{S_J}, 7")
    a(f"s_add_u32 s{S_T}, s{S_T}, 65536")
    a(f"v_add_u32 {t1}, s{S_T}, {t1}")
    a(f"v_xor_b32 v{V_AV}, s{S_J128}, {t1}")
    for dt in range(1, 8): a(f"v_xor_b32 v{V_AV+dt}, {dt*32}, v{V_AV}")
    a(f"v_and_b32 {t0}, 1, {tg}")
    a(f"v_lshlrev_b32 {t0}, 5, {t0}")
    a(f"v_lshrrev_b32 {t1}, 1, {tg}")
    a(f"v_lshl_add_u32 {t0}, {t1}, 4, {t0}")
    a(f"v_lshl_add_u32 {t0}, {t15}, 8, {t0}")
    a(f"v_add_u32 v{V_OOFF}, s{S_J128}, {t0}")
    a(f"s_mul_i32 s{S_T}, s{S_W}, 20480")
    a(f"v_lshlrev_b32 {t0}, 4, v{V_LANE}")
    a(f"v_add_u32 v{V_X}, s{S_T}, {t0}")
    cval = math.log2(math.e) / math.sqrt(128.0)
    import struct
    cbits = struct.unpack("<I", struct.pack("<f", cval))[0]
    a(f"s_mov_b32 s{S_C}, {cbits:#x}"); a(f"s_mov_b32 s{S_C+1}, {cbits:#x}")
    a(f"s_mov_b32 s{S_HI}, 0x4e800000")
    a(f"s_mov_b32 s{S_SLOW}, 0")
    def zero_acc():
        for r in range(0, 80, 2): a(f"v_mov_b64 v[{V_OOWN+r}:{V_OOWN+r+1}], 0")
        for r in range(100): a(f"v_accvgpr_write_b32 a{A_OSND+r}, 0")
    zero_acc()
    for r in range(32): a(f"v_accvgpr_write_b32 a{A_VF+32+r}, 0")
    a(f"v_mov_b32 {t0}, 0x3f803f80")
    for r in range(4): a(f"v_accvgpr_write_b32 a{A_ONE+r}, {t0}")
    for r in range(4): a(f"v_mov_b32 {vPr(1, r)}, 0")
    nafter = 8 * 3 + 4
    for qt in range(5):
        a(f"s_waitcnt vmcnt({nafter + 4 * (4 - qt)})")
        for r in range(16):
            q = V_Q + qt * 16 + r
            tb = V_T + 8 + 2 * (r % 4)
            a(f"v_lshlrev_b32 v{tb}, 16, v{q}")
            a(f"v_and_b32 v{tb+1}, 0xffff0000, v{q}")
            a(f"v_pk_mul_f32 v[{tb}:{tb+1}], v[{tb}:{tb+1}], s[{S_C}:{S_C+1}]")
            a(f"v_cvt_pk_bf16_f32 v{q}, v{tb}, v{tb+1}")
    a(f"s_waitcnt vmcnt({nafter - 4})")
    a("s_barrier")
    for kt in range(2):
        for s in range(4): a(rd_k(0, 0, kt, s))
    a("s_waitcnt lgkmcnt(4)")
    tq = [V_S, V_S + 4, V_S + 8, V_S + 12, V_T + 16]
    for qt in range(5):
        for s in range(4):
            c = "0" if s == 0 else f"v[{tq[qt]}:{tq[qt]+3}]"
            a(f"{MF} v[{tq[qt]}:{tq[qt]+3}], {aKF(0, 0, s)}, {vq(qt, s)}, {c}")
    a(f"s_waitcnt vmcnt({nafter - 8})")
    a("s_barrier")
    mx = [V_T + 20 + k for k in range(5)]
    my = [V_T + 25 + k for k in range(5)]
    a("s_nop 3")
    for qt in range(5):
        a(f"v_max3_f32 v{mx[qt]}, v{tq[qt]}, v{tq[qt]+1}, v{tq[qt]+2}")
    for qt in range(5):
        a(f"v_max_f32 v{mx[qt]}, v{mx[qt]}, v{tq[qt]+3}")
    for qt in range(5): a(f"v_mov_b32 v{my[qt]}, v{mx[qt]}")
    a("s_nop 0")
    for qt in range(5): a(f"v_permlane16_swap_b32 v{mx[qt]}, v{my[qt]}")
    for qt in range(5): a(f"v_max_f32 v{mx[qt]}, v{mx[qt]}, v{my[qt]}")
    for qt in range(5): a(f"v_mov_b32 v{my[qt]}, v{mx[qt]}")
    a("s_nop 0")
    for qt in range(5): a(f"v_permlane32_swap_b32 v{mx[qt]}, v{my[qt]}")
    for qt in range(5): a(f"v_max_f32 v{mx[qt]}, v{mx[qt]}, v{my[qt]}")
    for qt in range(5):
        for r in range(4): a(f"v_sub_f32 v{V_NEGM + qt*4 + r}, 0, v{mx[qt]}")

    base = [[('e', 0)], [('e', 1)], [('c', 0)], [], [('e', 2)], [('e', 3)], [('c', 1)], [],
            [('e', 4)], [('e', 5)], [('c', 2)], [], [('e', 6)], [('e', 7)], [('c', 3)], [], []]
    sched = [[list(g) for g in base] for k in range(5)]
    def put(k, g, it): sched[k][g].append(it)
    for idx, (k, g) in enumerate([(2, 2), (2, 3), (2, 3), (2, 6), (2, 7), (2, 7), (2, 10), (2, 14)]): put(k, g, ('k', idx))
    vpos = [(2, 15), (2, 15), (3, 2), (3, 6), (3, 7), (3, 7), (3, 10), (3, 14),
            (4, 2), (4, 6), (4, 10), (4, 14), (0, 2), (0, 6), (0, 10), (0, 14)]
    for idx, (k, g) in enumerate(vpos): put(k, g, ('v', idx))
    dpos = [(2, 11), (3, 3), (3, 15), (4, 7), (0, 3), (0, 15), (1, 7), (1, 16)]
    for idx, (k, g) in enumerate(dpos): put(k, g, ('d', idx))

    def unit(t, k, scal):
        u = 5 * t + k
        un = u + 1; tn, qn = divmod(un, 5)
        up = u - 1; tp, qp = divmod(up, 5)
        mf = []
        for kt in range(2):
            for s in range(4): mf.append(mf_qk(tn % 2, un % 2, qn, kt, s))
        for dt in range(8): mf.append(mf_pv(tp % 2, up % 2, qp, dt))
        mf.append(mf_l(up % 2, qp))
        for g in range(17):
            a(mf[g])
            for sc in scal.get(g, []): a(sc)
            items = sched[k][g]
            for it in items:
                kind, idx = it
                if kind == 'e': a(f"v_exp_f32 {vSr(u % 2, idx)}, {vSr(u % 2, idx)}")
                elif kind == 'c': a(f"v_cvt_pk_bf16_f32 {vPr(u % 2, idx)}, {vSr(u % 2, 2*idx)}, {vSr(u % 2, 2*idx+1)}")
                elif kind == 'k': a(rd_k((t + 1) % 2, (t + 1) % cfg.R, idx // 4, idx % 4))
                elif kind == 'v':
                    tt = t + 1 if k >= 2 else t
                    a(rd_v(tt % 2, tt % cfg.R, idx // 2, idx % 2))
                elif kind == 'd': a(dma('k' if idx < 4 else 'v', idx % 4))

    def tile(t, last):
        nv_after_k = sum(1 for (k, g) in vpos if k in (2, 3) and (k, g) > (2, 14))
        for k in range(5):
            scal = {}
            if k == 0:
                scal[1] = [setm0('v', (t + 3) % cfg.R)]
            if k == 1:
                scal[7 - 1] = []
                scal[7] = ["s_waitcnt lgkmcnt(0)"]
                scal[16] = []
            if k == 2:
                scal[0] = ["s_barrier"]
                scal[5] = [f"s_add_u32 s{S_TOFF}, s{S_TOFF}, 16384"]
                scal[9] = [setm0('k', t % cfg.R)]
            if k == 3:
                scal[16] = [f"s_waitcnt lgkmcnt({nv_after_k})"]
            if k == 4 and last:
                scal[14] = [f"s_sub_u32 s{S_CNT}, s{S_CNT}, 1"]
                scal[15] = [f"s_cmp_lg_u32 s{S_CNT}, 0"]
            if k == 1:
                pass
            unit(t, k, scal)
            if k == 1:
                a("s_waitcnt vmcnt(16)")

    for idx, (k, g) in enumerate(vpos):
        if k >= 2: a(rd_v(0, 0, idx // 2, idx % 2))
    a(f"s_waitcnt lgkmcnt({sum(1 for (k, g) in vpos if k >= 2)})")
    for kt in range(2):
        for s in range(4): a(mf_qk(0, 0, 0, kt, s))
    a(f"s_mov_b32 s{S_CNT}, {cfg.ntiles // cfg.U}")
    a("s_nop 7")
    if cfg.stamps:
        a("s_memrealtime s[68:69]"); a("s_memtime s[74:75]")
    a(".p2align 6")
    a("L_loop:")
    for t in range(cfg.U):
        tile(t, t == cfg.U - 1)
    a("s_cbranch_scc1 L_loop")
    ul = 5 * cfg.ntiles - 1
    tl, ql = divmod(ul, 5)
    for dt in range(8): a(mf_pv(tl % 2, ul % 2, ql, dt))
    a(mf_l(ul % 2, ql))
    if cfg.stamps:
        a("s_memrealtime s[70:71]"); a("s_memtime s[76:77]")

    a("L_epi:")
    a("s_waitcnt vmcnt(0) lgkmcnt(0)")
    a("s_barrier")
    a("s_nop 7")
    lq = [V_T + k for k in range(5)]
    for qt in range(5): a(f"v_accvgpr_read_b32 v{lq[qt]}, a{A_L + qt*4}")
    for qt in range(5):
        for dt in range(4, 8):
            a(f"ds_write_b128 v{V_X}, {oacc(dt, qt)} offset:{(qt*4 + dt - 4) * 1024}")
    a(f"s_mov_b64 s[{S_BAD}:{S_BAD+1}], 0")
    for qt in range(5):
        a(f"v_cmp_nle_f32 vcc, v{lq[qt]}, v{V_T+5}" if False else f"v_cmp_nge_f32 vcc, s{S_HI}, v{lq[qt]}")
        a(f"s_or_b64 s[{S_BAD}:{S_BAD+1}], s[{S_BAD}:{S_BAD+1}], vcc")
    if cfg.force_slow:
        a(f"s_mov_b64 s[{S_BAD}:{S_BAD+1}], -1")
    a(f"s_cmp_lg_u64 s[{S_BAD}:{S_BAD+1}], 0")
    a(f"s_cselect_b32 s{S_T}, 1, 0")
    xa, xb = f"v{V_T+5}", f"v{V_T+6}"
    a(f"s_mul_i32 s{S_T+1}, s{S_W}, 2560")
    a(f"s_add_u32 s{S_T+1}, s{S_T+1}, 81920")
    a(f"v_lshlrev_b32 {xa}, 3, v{V_LANE}")
    a(f"v_add_u32 {xa}, s{S_T+1}, {xa}")
    pr = V_T + 8
    for qt in range(5):
        a(f"v_mov_b32 v{pr + 2*qt}, v{V_NEGM + qt*4}")
        a(f"v_mov_b32 v{pr + 2*qt + 1}, v{lq[qt]}")
        a(f"ds_write_b64 {xa}, v[{pr+2*qt}:{pr+2*qt+1}] offset:{qt*512}")
    a(f"s_lshl_b32 s{S_T+2}, s{S_W}, 2")
    a(f"s_add_u32 s{S_T+2}, s{S_T+2}, 92160")
    a(f"v_mov_b32 {xb}, s{S_T+2}")
    a(f"v_mov_b32 v{V_T+7}, s{S_T}")
    a(f"ds_write_b32 {xb}, v{V_T+7}")
    a("s_waitcnt lgkmcnt(0)")
    a("s_barrier")
    fl = V_T + 20
    a(f"v_mov_b32 {xb}, 92160")
    a(f"ds_read_b128 v[{fl}:{fl+3}], {xb}")
    a(f"s_xor_b32 s{S_T+1}, s{S_W}, 1")
    a(f"s_mul_i32 s{S_T+2}, s{S_T+1}, 2560")
    a(f"s_add_u32 s{S_T+2}, s{S_T+2}, 81920")
    a(f"v_lshlrev_b32 {xa}, 3, v{V_LANE}")
    a(f"v_add_u32 {xa}, s{S_T+2}, {xa}")
    for qt in range(5):
        a(f"ds_read_b64 v[{pr+2*qt}:{pr+2*qt+1}], {xa} offset:{qt*512}")
    a("s_waitcnt lgkmcnt(5)")
    a(f"v_or_b32 v{fl}, v{fl}, v{fl+1}")
    a(f"v_or_b32 v{fl+2}, v{fl+2}, v{fl+3}")
    a(f"v_or_b32 v{fl}, v{fl}, v{fl+2}")
    a("s_nop 0")
    a(f"v_readfirstlane_b32 s{S_T}, v{fl}")
    a("s_nop 3")
    a(f"s_andn2_b32 s{S_T}, s{S_T}, s{S_SLOW}")
    a(f"s_cmp_lg_u32 s{S_T}, 0")
    a("s_cbranch_scc1 L_slow")
    a(f"s_mul_i32 s{S_T+1}, s{S_T+1}, 20480")
    a(f"v_lshlrev_b32 {xb}, 4, v{V_LANE}")
    a(f"v_add_u32 {xb}, s{S_T+1}, {xb}")
    for qt in range(5):
        for dt in range(4):
            b = V_Q + (qt * 4 + dt) * 4
            a(f"ds_read_b128 v[{b}:{b+3}], {xb} offset:{(qt*4 + dt) * 1024}")
    a("s_waitcnt lgkmcnt(15)")
    fa = V_S
    fb = V_S + 10
    FA = [V_T + 20 + k for k in range(5)]
    FB = [V_T + 26 + k for k in range(5)]
    t_m = [V_S + k for k in range(5)]
    for qt in range(5):
        a(f"v_min_f32 v{t_m[qt]}, v{V_NEGM + qt*4}, v{pr + 2*qt}")
    for qt in range(5):
        a(f"v_sub_f32 v{FA[qt]}, v{t_m[qt]}, v{V_NEGM + qt*4}")
        a(f"v_sub_f32 v{FB[qt]}, v{t_m[qt]}, v{pr + 2*qt}")
    for qt in range(5):
        a(f"v_exp_f32 v{FA[qt]}, v{FA[qt]}")
        a(f"v_exp_f32 v{FB[qt]}, v{FB[qt]}")
    a("s_nop 0")
    for qt in range(5):
        a(f"v_mul_f32 v{lq[qt]}, v{lq[qt]}, v{FA[qt]}")
    for qt in range(5):
        a(f"v_fma_f32 v{lq[qt]}, v{pr + 2*qt + 1}, v{FB[qt]}, v{lq[qt]}")
    for qt in range(5):
        a(f"v_rcp_f32 v{lq[qt]}, v{lq[qt]}")
    a("s_nop 0")
    PA = [V_S + 2 * k for k in range(5)]
    PB = [V_S + 10 + 2 * k for k in range(5)]
    for qt in range(5):
        a(f"v_mul_f32 v{PA[qt]}, v{FA[qt]}, v{lq[qt]}")
        a(f"v_mul_f32 v{PB[qt]}, v{FB[qt]}, v{lq[qt]}")
    pol = (" " + cfg.o_pol) if cfg.o_pol else ""
    nrd = 20
    for qt in range(5):
        a(f"s_waitcnt lgkmcnt({min(15, 16 - 4*qt) if qt < 4 else 0})")
        for dt in range(4):
            o = V_OOWN + (qt * 4 + dt) * 4
            r = V_Q + (qt * 4 + dt) * 4
            for h in range(2):
                a(f"v_pk_mul_f32 v[{o+2*h}:{o+2*h+1}], v[{o+2*h}:{o+2*h+1}], v[{PA[qt]}:{PA[qt]+1}] op_sel_hi:[1,0]")
            for h in range(2):
                a(f"v_pk_fma_f32 v[{o+2*h}:{o+2*h+1}], v[{r+2*h}:{r+2*h+1}], v[{PB[qt]}:{PB[qt]+1}], v[{o+2*h}:{o+2*h+1}] op_sel_hi:[1,0,1]")
        for e in range(2):
            ox = V_OOWN + (qt * 4 + 2 * e) * 4
            oy = ox + 4
            d = V_Q + (qt * 4 + 2 * e) * 4
            a(f"v_cvt_pk_bf16_f32 v{d}, v{ox}, v{ox+1}")
            a(f"v_cvt_pk_bf16_f32 v{d+1}, v{ox+2}, v{ox+3}")
            a(f"v_cvt_pk_bf16_f32 v{d+2}, v{oy}, v{oy+1}")
            a(f"v_cvt_pk_bf16_f32 v{d+3}, v{oy+2}, v{oy+3}")
        a("s_nop 0")
        for e in range(2):
            d = V_Q + (qt * 4 + 2 * e) * 4
            a(f"v_permlane16_swap_b32 v{d}, v{d+2}")
            a(f"v_permlane16_swap_b32 v{d+1}, v{d+3}")
        for e in range(2):
            d = V_Q + (qt * 4 + 2 * e) * 4
            a(f"buffer_store_dwordx4 v[{d}:{d+3}], v{V_OOFF}, s[{SRD_O}:{SRD_O+3}], s{S_QT+qt} offen offset:{e*64}{pol}")
    if cfg.stamps:
        a("s_waitcnt vmcnt(0)")
        a("s_memrealtime s[72:73]")
        a("s_waitcnt lgkmcnt(0)")
        a("s_mov_b32 s80, s64"); a("s_and_b32 s81, s65, 0xffff"); a("s_mov_b32 s82, 0x100000"); a("s_mov_b32 s83, 0x20000")
        a("s_lshl_b32 s84, s2, 2"); a(f"s_add_u32 s84, s84, s{S_W}"); a("s_lshl_b32 s84, s84, 5")
        a("s_sub_u32 s76, s76, s74")
        for k, sr in enumerate((66, 68, 70, 72, 76)):
            a(f"v_mov_b32 v{V_T+k}, s{sr}")
        a(f"v_mov_b32 v{V_T+5}, s84")
        a(f"v_cmp_eq_u32 vcc, 0, v{V_LANE}")
        a("s_and_saveexec_b64 s[86:87], vcc")
        for k in range(5):
            a(f"buffer_store_dword v{V_T+k}, v{V_T+5}, s[80:83], 0 offen offset:{4*k}")
        a("s_waitcnt vmcnt(0)")
    a("L_done:")
    a("s_endpgm")

    a("L_slow:")
    a("s_waitcnt vmcnt(0) lgkmcnt(0)")
    a(f"s_mov_b32 s{S_SLOW}, 1")
    zero_acc()
    for qt in range(5):
        for r in range(4): a(f"v_mov_b32 v{V_NEGM + qt*4 + r}, 0x7f800000")
    a(f"s_lshl_b32 s{S_TOFF}, s{S_W}, 12")
    a(f"s_mov_b32 s{S_CNT}, {cfg.ntiles}")
    a("L_slow_loop:")
    a("s_waitcnt lgkmcnt(0)")
    a("s_barrier")
    issue_tile(0, 'kv')
    a(f"s_add_u32 s{S_TOFF}, s{S_TOFF}, 16384")
    a("s_waitcnt vmcnt(0)")
    a("s_barrier")
    for kt in range(2):
        for s in range(4): a(rd_k(0, 0, kt, s))
    a("s_waitcnt lgkmcnt(0)")
    for dt in range(8):
        for kk in range(2): a(rd_v(0, 0, dt, kk))
        if dt == 3: a("s_waitcnt lgkmcnt(0)")
    a("s_waitcnt lgkmcnt(0)")
    T = V_T
    for qt in range(5):
        for kt in range(2):
            for s in range(4): a(mf_qk(0, 0, qt, kt, s, cinit="0"))
        a("s_nop 7"); a("s_nop 1")
        S0 = V_S
        a(f"v_max3_f32 v{T}, v{S0}, v{S0+1}, v{S0+2}")
        a(f"v_max3_f32 v{T}, v{T}, v{S0+3}, v{S0+4}")
        a(f"v_max3_f32 v{T}, v{T}, v{S0+5}, v{S0+6}")
        a(f"v_max_f32 v{T}, v{T}, v{S0+7}")
        a(f"v_mov_b32 v{T+1}, v{T}")
        a("s_nop 1")
        a(f"v_permlane16_swap_b32 v{T}, v{T+1}")
        a("s_nop 1")
        a(f"v_max_f32 v{T}, v{T}, v{T+1}")
        a(f"v_mov_b32 v{T+1}, v{T}")
        a("s_nop 1")
        a(f"v_permlane32_swap_b32 v{T}, v{T+1}")
        a("s_nop 1")
        a(f"v_max_f32 v{T}, v{T}, v{T+1}")
        nm = V_NEGM + qt * 4
        a(f"v_sub_f32 v{T}, 0, v{T}")
        a(f"v_min_f32 v{T}, v{T}, v{nm}")
        a(f"v_sub_f32 v{T+2}, v{T}, v{nm}")
        a(f"v_exp_f32 v{T+2}, v{T+2}")
        for r in range(8): a(f"v_add_f32 v{S0+r}, v{S0+r}, v{T}")
        for r in range(8): a(f"v_exp_f32 v{S0+r}, v{S0+r}")
        for r in range(4): a(f"v_mov_b32 v{nm+r}, v{T}")
        for r in range(4): a(f"v_cvt_pk_bf16_f32 {vPr(0, r)}, v{S0+2*r}, v{S0+2*r+1}")
        for dt in range(4):
            o = V_OOWN + (qt * 4 + dt) * 4
            for r in range(4): a(f"v_mul_f32 v{o+r}, v{o+r}, v{T+2}")
        for k in range(16):
            ar = A_OSND + qt * 16 + k
            a(f"v_accvgpr_read_b32 v{T+4+k}, a{ar}")
        a(f"v_accvgpr_read_b32 v{T+3}, a{A_L + qt*4}")
        for k in range(16): a(f"v_mul_f32 v{T+4+k}, v{T+4+k}, v{T+2}")
        a(f"v_mul_f32 v{T+3}, v{T+3}, v{T+2}")
        for k in range(16):
            ar = A_OSND + qt * 16 + k
            a(f"v_accvgpr_write_b32 a{ar}, v{T+4+k}")
        a(f"v_accvgpr_write_b32 a{A_L + qt*4}, v{T+3}")
        a("s_nop 1")
        for dt in range(8): a(mf_pv(0, 0, qt, dt))
        a(mf_l(0, qt))
    a(f"s_sub_u32 s{S_CNT}, s{S_CNT}, 1")
    a(f"s_cmp_lg_u32 s{S_CNT}, 0")
    a("s_cbranch_scc1 L_slow_loop")
    a("s_nop 7")
    a("s_branch L_epi")
    return L

HEADER = """; Kernarg layout for this problem (48 bytes, ptrs only, base s[0:1]):
; @launch grid=(256,1,1) block=(256,1,1) lds={lds}
.amdgcn_target "amdgcn-amd-amdhsa--gfx950"
.text
.globl {name}
.p2align 8
.type {name},@function
{name}:
"""
FOOTER = """
.section .rodata,"a"
.p2align 6
.amdhsa_kernel {name}
  .amdhsa_next_free_vgpr 512
  .amdhsa_next_free_sgpr 102
  .amdhsa_accum_offset 256
  .amdhsa_group_segment_fixed_size 0
  .amdhsa_kernarg_size 48
  .amdhsa_user_sgpr_count 2
  .amdhsa_user_sgpr_kernarg_segment_ptr 1
  .amdhsa_system_sgpr_workgroup_id_x 1
  .amdhsa_float_denorm_mode_32 3
.end_amdhsa_kernel
"""
META = """.amdgpu_metadata
---
amdhsa.version: [1, 2]
amdhsa.kernels:
  - .name: {name}
    .symbol: {name}.kd
    .kernarg_segment_size: 48
    .kernarg_segment_align: 8
    .group_segment_fixed_size: 0
    .private_segment_fixed_size: 0
    .wavefront_size: 64
    .sgpr_count: 102
    .vgpr_count: 512
    .max_flat_workgroup_size: 256
    .args:
      - {{.name: kernargs, .size: 48, .offset: 0, .value_kind: by_value}}
...
.end_amdgpu_metadata
"""

def render(cfg, meta=False):
    body = gen(cfg)
    out = HEADER.format(name=NAME, lds=cfg.lds)
    for l in body:
        out += (l if l.endswith(":") or l.startswith(".") else "    " + l) + "\n"
    out += FOOTER.format(name=NAME)
    if meta: out += META.format(name=NAME)
    return out

if __name__ == "__main__":
    import argparse, subprocess
    ap = argparse.ArgumentParser()
    ap.add_argument("-o", default="k.s")
    ap.add_argument("--kv", default=""); ap.add_argument("--q", default=""); ap.add_argument("--op", default="")
    ap.add_argument("--stamps", action="store_true"); ap.add_argument("--slow", action="store_true")
    ap.add_argument("--meta", action="store_true")
    args = ap.parse_args()
    cfg = Cfg(); cfg.kv_pol = args.kv; cfg.q_pol = args.q; cfg.o_pol = args.op
    cfg.stamps = args.stamps; cfg.force_slow = args.slow
    open(args.o, "w").write(render(cfg, args.meta))
    if args.meta:
        r = subprocess.run(["clang", "-x", "assembler", "-target", "amdgcn-amd-amdhsa", "-mcpu=gfx950",
                            args.o, "-o", args.o[:-2] + ".co"], capture_output=True, text=True)
        if r.returncode: print(r.stderr[:4000]); sys.exit(1)
```

```python
import sys, math

NAME = "standalone__gqa_softmax__near_ridge_kernel"

class Cfg:
    kv_pol = ""
    q_pol = ""
    o_pol = ""
    stamps = False
    ntiles = 32
    U = 4
    R = 4
    force_slow = False
    lds = 131072
    rot = 0
    nq_first = 2
    pro_order = [(3, 'k', 1), (4, 'v', 1), (5, 'k', 2), (6, 'v', 2), (7, 'k', 3)]
    dbg = ()

def gen(cfg):
    L = []
    a = L.append
    V_OOWN = 0
    V_Q = 80
    V_NEGM = 160
    V_S = 180
    V_P = 196
    V_AK = 204
    V_AV = 208
    V_DV = 216
    V_T = 218
    V_LANE = 252
    V_QOFF = 253
    V_OOFF = 254
    V_X = 255
    A_OSND = 0
    A_L = 80
    A_KF = 100
    A_VF = 164
    A_ONE = 228
    S_W = 3
    SRD_K, SRD_V, SRD_Q, SRD_O = 12, 16, 20, 24
    S_TOFF = 28
    S_M0K = 32
    S_M0V = 36
    S_QT = 40
    S_CNT = 45
    S_J = 46
    S_I = 47
    S_C = 48
    S_HI = 50
    S_SLOW = 51
    S_BAD = 52
    S_T = 54
    S_J128 = 60

    def vq(qt, s): b = V_Q + (qt * 4 + s) * 4; return f"v[{b}:{b+3}]"
    def vnegm(qt): b = V_NEGM + qt * 4; return f"v[{b}:{b+3}]"
    def vS(buf, kt): b = V_S + buf * 8 + kt * 4; return f"v[{b}:{b+3}]"
    def vSr(buf, r): return f"v{V_S + buf * 8 + r}"
    def vP(buf): b = V_P + buf * 4; return f"v[{b}:{b+3}]"
    def vPr(buf, r): return f"v{V_P + buf * 4 + r}"
    def aKF(buf, kt, s): b = A_KF + buf * 32 + (kt * 4 + s) * 4; return f"a[{b}:{b+3}]"
    def aVF(buf, dt): b = A_VF + buf * 32 + dt * 4; return f"a[{b}:{b+3}]"
    def aVFh(buf, dt, kk): b = A_VF + buf * 32 + dt * 4 + kk * 2; return f"a[{b}:{b+1}]"
    def oacc(dt, qt):
        if dt < 4: b = V_OOWN + (qt * 4 + dt) * 4; return f"v[{b}:{b+3}]"
        b = A_OSND + (qt * 4 + dt - 4) * 4; return f"a[{b}:{b+3}]"
    def aL(qt): b = A_L + qt * 4; return f"a[{b}:{b+3}]"
    aONE = f"a[{A_ONE}:{A_ONE+3}]"
    MF = "v_mfma_f32_16x16x32_bf16"

    def mf_qk(kbuf, sbuf, qt, kt, s, cinit=None):
        c = vS(sbuf, kt) if s else (vnegm(qt) if cinit is None else cinit)
        return f"{MF} {vS(sbuf, kt)}, {aKF(kbuf, kt, s)}, {vq(qt, s)}, {c}"
    def mf_pv(vbuf, pbuf, qt, dt):
        return f"{MF} {oacc(dt, qt)}, {aVF(vbuf, dt)}, {vP(pbuf)}, {oacc(dt, qt)}"
    def mf_l(pbuf, qt):
        return f"{MF} {aL(qt)}, {aONE}, {vP(pbuf)}, {aL(qt)}"
    def rd_k(buf, slot, kt, s):
        return f"ds_read_b128 {aKF(buf, kt, s)}, v{V_AK + s} offset:{slot * 16384 + kt * 4096}"
    def rd_v(buf, slot, dt, kk):
        return f"ds_read_b64_tr_b16 {aVFh(buf, dt, kk)}, v{V_AV + dt} offset:{slot * 16384 + kk * 4096}"
    def dma(which, p):
        srd = SRD_K if which == 'k' else SRD_V
        pol = (" " + cfg.kv_pol) if cfg.kv_pol else ""
        return f"buffer_load_dwordx4 v{V_DV + (p & 1)}, s[{srd}:{srd+3}], s{S_TOFF} offen offset:{p * 1024}{pol} lds"
    def setm0(which, slot):
        return f"s_mov_b32 m0, s{(S_M0K if which == 'k' else S_M0V) + slot}"

    a("s_cmp_ge_u32 s2, 256")
    a("s_cbranch_scc1 L_done")
    a("s_load_dwordx4 s[4:7], s[0:1], 0")
    a("s_load_dwordx4 s[8:11], s[0:1], 16")
    if cfg.stamps:
        a("s_load_dwordx2 s[64:65], s[0:1], 40")
        a("s_memrealtime s[66:67]")
    a(f"v_lshrrev_b32 v{V_T}, 6, v0")
    a(f"v_and_b32 v{V_LANE}, 63, v0")
    a(f"v_readfirstlane_b32 s{S_W}, v{V_T}")
    t15, tg, t0, t1, t2, t3 = [f"v{V_T + k}" for k in range(1, 7)]
    a(f"v_and_b32 {t15}, 15, v{V_LANE}")
    a(f"v_lshrrev_b32 {tg}, 4, v{V_LANE}")
    a(f"s_lshr_b32 s{S_I}, s{S_W}, 1")
    a(f"s_and_b32 s{S_J}, s{S_W}, 1")
    a(f"s_lshr_b32 s{S_T}, s2, 4")
    a(f"s_lshl_b32 s{S_T}, s{S_T}, 3")
    a(f"s_and_b32 s{S_T+1}, s2, 7")
    a(f"s_add_u32 s{S_T}, s{S_T}, s{S_T+1}")
    a(f"s_lshr_b32 s{S_T+1}, s2, 3")
    a(f"s_and_b32 s{S_T+1}, s{S_T+1}, 1")
    a(f"s_lshl_b32 s{S_T+2}, s{S_T}, 1")
    a(f"s_add_u32 s{S_T+1}, s{S_T+2}, s{S_T+1}")
    a(f"s_mul_i32 s{S_T+1}, s{S_T+1}, 40960")
    a(f"s_mul_i32 s{S_T+2}, s{S_I}, 20480")
    a(f"s_add_u32 s{S_T+1}, s{S_T+1}, s{S_T+2}")
    a(f"s_lshl_b32 s{S_T}, s{S_T}, 19")
    a(f"v_lshlrev_b32 {t0}, 8, {t15}")
    a(f"v_lshl_add_u32 v{V_QOFF}, {tg}, 4, {t0}")
    a(f"v_lshlrev_b32 {t0}, 1, {tg}")
    a(f"v_xor_b32 {t0}, {t0}, {t15}")
    a(f"v_lshlrev_b32 {t0}, 4, {t0}")
    a(f"v_lshl_add_u32 v{V_DV}, {tg}, 8, {t0}")
    a(f"v_xor_b32 v{V_DV+1}, 128, v{V_DV}")
    for q in range(5): a(f"s_mov_b32 s{S_QT+q}, {q * 4096}")
    a(f"s_lshl_b32 s{S_TOFF}, s{S_W}, 12")
    for sl in range(cfg.R):
        a(f"s_add_u32 s{S_M0K+sl}, s{S_TOFF}, {sl * 16384}")
        a(f"s_add_u32 s{S_M0V+sl}, s{S_TOFF}, {65536 + sl * 16384}")
    a("s_waitcnt lgkmcnt(0)")
    if cfg.stamps: a("s_memrealtime s[88:89]")
    a(f"s_add_u32 s{SRD_Q}, s4, s{S_T+1}"); a(f"s_addc_u32 s{SRD_Q+1}, s5, 0")
    a(f"s_and_b32 s{SRD_Q+1}, s{SRD_Q+1}, 0xffff")
    a(f"s_mov_b32 s{SRD_Q+2}, 20480"); a(f"s_mov_b32 s{SRD_Q+3}, 0x20000")
    a(f"s_add_u32 s{SRD_K}, s6, s{S_T}"); a(f"s_addc_u32 s{SRD_K+1}, s7, 0")
    a(f"s_and_b32 s{SRD_K+1}, s{SRD_K+1}, 0xffff")
    a(f"s_mov_b32 s{SRD_K+2}, 524288"); a(f"s_mov_b32 s{SRD_K+3}, 0x20000")
    def issue_part(which, slot):
        a(setm0(which, slot)); a("s_nop 0")
        for p in range(4): a(dma(which, p))
    def issue_tile(slot, parts):
        for which in parts: issue_part(which, slot)
    issue_part('k', 0)
    pol = (" " + cfg.q_pol) if cfg.q_pol else ""
    def load_q(qt):
        for s in range(4):
            a(f"buffer_load_dwordx4 {vq(qt, s)}, v{V_QOFF}, s[{SRD_Q}:{SRD_Q+3}], s{S_QT+qt} offen offset:{s*64}{pol}")
    for qt in range(cfg.nq_first): load_q(qt)
    a(f"s_add_u32 s{SRD_V}, s8, s{S_T}"); a(f"s_addc_u32 s{SRD_V+1}, s9, 0")
    a(f"s_and_b32 s{SRD_V+1}, s{SRD_V+1}, 0xffff")
    a(f"s_mov_b32 s{SRD_V+2}, 524288"); a(f"s_mov_b32 s{SRD_V+3}, 0x20000")
    a(f"s_add_u32 s{SRD_O}, s10, s{S_T+1}"); a(f"s_addc_u32 s{SRD_O+1}, s11, 0")
    a(f"s_and_b32 s{SRD_O+1}, s{SRD_O+1}, 0xffff")
    a(f"s_mov_b32 s{SRD_O+2}, 20480"); a(f"s_mov_b32 s{SRD_O+3}, 0x20000")
    a(f"s_lshl_b32 s{S_T}, s{S_J}, 13")
    a(f"v_and_b32 {t0}, 7, {t15}")
    a(f"v_lshlrev_b32 {t0}, 1, {t0}")
    a(f"v_xor_b32 {t0}, {t0}, {tg}")
    a(f"v_lshlrev_b32 {t0}, 4, {t0}")
    a(f"v_lshl_add_u32 {t0}, {t15}, 8, {t0}")
    a(f"v_add_u32 v{V_AK}, s{S_T}, {t0}")
    for s in range(1, 4): a(f"v_xor_b32 v{V_AK+s}, {s*64}, v{V_AK}")
    a(f"v_lshrrev_b32 {t0}, 2, {t15}")
    a(f"v_lshl_add_u32 {t0}, {tg}, 2, {t0}")
    a(f"v_and_b32 {t1}, 7, {t0}")
    a(f"v_lshlrev_b32 {t1}, 1, {t1}")
    a(f"v_bfe_u32 {t2}, {t15}, 1, 1")
    a(f"v_xor_b32 {t1}, {t1}, {t2}")
    a(f"v_lshlrev_b32 {t1}, 4, {t1}")
    a(f"v_lshl_add_u32 {t1}, {t0}, 8, {t1}")
    a(f"v_and_b32 {t2}, 1, {t15}")
    a(f"v_lshl_add_u32 {t1}, {t2}, 3, {t1}")
    a(f"s_lshl_b32 s{S_J128}, s{S_J}, 7")
    a(f"s_add_u32 s{S_T}, s{S_T}, 65536")
    a(f"v_add_u32 {t1}, s{S_T}, {t1}")
    a(f"v_xor_b32 v{V_AV}, s{S_J128}, {t1}")
    for dt in range(1, 8): a(f"v_xor_b32 v{V_AV+dt}, {dt*32}, v{V_AV}")
    a(f"v_and_b32 {t0}, 1, {tg}")
    a(f"v_lshlrev_b32 {t0}, 5, {t0}")
    a(f"v_lshrrev_b32 {t1}, 1, {tg}")
    a(f"v_lshl_add_u32 {t0}, {t1}, 4, {t0}")
    a(f"v_lshl_add_u32 {t0}, {t15}, 8, {t0}")
    a(f"v_add_u32 v{V_OOFF}, s{S_J128}, {t0}")
    a(f"s_mul_i32 s{S_T}, s{S_W}, 20480")
    a(f"v_lshlrev_b32 {t0}, 4, v{V_LANE}")
    a(f"v_add_u32 v{V_X}, s{S_T}, {t0}")
    cval = math.log2(math.e) / math.sqrt(128.0)
    import struct
    cbits = struct.unpack("<I", struct.pack("<f", cval))[0]
    a(f"s_mov_b32 s{S_C}, {cbits:#x}"); a(f"s_mov_b32 s{S_C+1}, {cbits:#x}")
    a(f"s_mov_b32 s{S_HI}, 0x4e800000")
    a(f"s_mov_b32 s{S_SLOW}, 0")
    def zero_acc():
        for r in range(0, 80, 2): a(f"v_mov_b64 v[{V_OOWN+r}:{V_OOWN+r+1}], 0")
        for r in range(100): a(f"v_accvgpr_write_b32 a{A_OSND+r}, 0")
    zero_acc()
    for r in range(32): a(f"v_accvgpr_write_b32 a{A_VF+32+r}, 0")
    a(f"v_mov_b32 {t0}, 0x3f803f80")
    for r in range(4): a(f"v_accvgpr_write_b32 a{A_ONE+r}, {t0}")
    for r in range(4): a(f"v_mov_b32 {vPr(1, r)}, 0")
    if cfg.stamps: a("s_memrealtime s[90:91]")
    for qt in range(cfg.nq_first, 5): load_q(qt)
    issue_part('v', 0)
    order_after = cfg.pro_order
    issued = []
    def prescale(qt):
        for r in range(16):
            q = V_Q + qt * 16 + r
            tb = V_T + 8 + 2 * (r % 4)
            a(f"v_lshlrev_b32 v{tb}, 16, v{q}")
            a(f"v_and_b32 v{tb+1}, 0xffff0000, v{q}")
            a(f"v_pk_mul_f32 v[{tb}:{tb+1}], v[{tb}:{tb+1}], s[{S_C}:{S_C+1}]")
            a(f"v_cvt_pk_bf16_f32 v{q}, v{tb}, v{tb+1}")
    def late(point):
        for (pt, which, slot) in order_after:
            if pt == point:
                if which == 'k': a(f"s_add_u32 s{S_TOFF}, s{S_TOFF}, 16384")
                issue_part(which, slot); issued.append((which, slot))
    for qt in range(5):
        a(f"s_waitcnt vmcnt({4 * (4 - qt) + 4 + 4 * len(issued)})")
        if cfg.stamps and qt == 0: a("s_memrealtime s[92:93]")
        prescale(qt)
        late(qt)
    if cfg.stamps: a("s_memrealtime s[94:95]")
    a("s_barrier")
    if cfg.stamps: a("s_memrealtime s[96:97]"); a("s_waitcnt lgkmcnt(0)")
    for kt in range(2):
        for s in range(4): a(rd_k(0, 0, kt, s))
    a("s_waitcnt lgkmcnt(4)")
    tq = [V_S, V_S + 4, V_S + 8, V_S + 12, V_T + 16]
    for qt in range(5):
        for s in range(4):
            c = "0" if s == 0 else f"v[{tq[qt]}:{tq[qt]+3}]"
            a(f"{MF} v[{tq[qt]}:{tq[qt]+3}], {aKF(0, 0, s)}, {vq(qt, s)}, {c}")
    late(5)
    a(f"s_waitcnt vmcnt({4 * len(issued)})")
    a("s_barrier")
    late(6)
    mx = [V_T + 20 + k for k in range(5)]
    my = [V_T + 25 + k for k in range(5)]
    a("s_nop 3")
    for qt in range(5):
        a(f"v_max3_f32 v{mx[qt]}, v{tq[qt]}, v{tq[qt]+1}, v{tq[qt]+2}")
    for qt in range(5):
        a(f"v_max_f32 v{mx[qt]}, v{mx[qt]}, v{tq[qt]+3}")
    for qt in range(5): a(f"v_mov_b32 v{my[qt]}, v{mx[qt]}")
    a("s_nop 0")
    for qt in range(5): a(f"v_permlane16_swap_b32 v{mx[qt]}, v{my[qt]}")
    for qt in range(5): a(f"v_max_f32 v{mx[qt]}, v{mx[qt]}, v{my[qt]}")
    for qt in range(5): a(f"v_mov_b32 v{my[qt]}, v{mx[qt]}")
    a("s_nop 0")
    for qt in range(5): a(f"v_permlane32_swap_b32 v{mx[qt]}, v{my[qt]}")
    for qt in range(5): a(f"v_max_f32 v{mx[qt]}, v{mx[qt]}, v{my[qt]}")
    for qt in range(5):
        for r in range(4): a(f"v_sub_f32 v{V_NEGM + qt*4 + r}, 0, v{mx[qt]}")

    base = [[('e', 0)], [('e', 1)], [('c', 0)], [], [('e', 2)], [('e', 3)], [('c', 1)], [],
            [('e', 4)], [('e', 5)], [('c', 2)], [], [('e', 6)], [('e', 7)], [('c', 3)], [], []]
    sched = [[list(g) for g in base] for k in range(5)]
    def put(k, g, it): sched[k][g].append(it)
    kpos = [(2, 2), (2, 3), (2, 6), (2, 7), (2, 10), (2, 14), (2, 15), (3, 2)]
    for idx, (k, g) in enumerate(kpos): put(k, g, ('k', idx))
    vpos = [(3, 6), (3, 7), (3, 10), (3, 11), (3, 14), (4, 2), (4, 3), (4, 6),
            (4, 10), (4, 11), (4, 14), (0, 2), (0, 6), (0, 7), (0, 10), (0, 14)]
    for idx, (k, g) in enumerate(vpos): put(k, g, ('v', idx))
    dpos = [(2, 11), (3, 3), (3, 15), (4, 7), (0, 3), (0, 15), (1, 7), (1, 15)]
    for idx, (k, g) in enumerate(dpos): put(k, g, ('d', idx))
    order = {'k': 0, 'v': 0, 'd': 0, 'e': 1, 'c': 1}
    for k in range(5):
        for g in range(17): sched[k][g].sort(key=lambda it: order[it[0]])

    def unit(t, k, scal):
        u = 5 * t + k
        un = u + 1; tn, qn = divmod(un, 5)
        up = u - 1; tp, qp = divmod(up, 5)
        mf = []
        for kt in range(2):
            for s in range(4): mf.append(mf_qk(tn % 2, un % 2, qn, kt, s))
        for dt in range(8): mf.append(mf_pv(tp % 2, up % 2, qp, dt))
        mf.append(mf_l(up % 2, qp))
        for g in range(17):
            a(mf[g])
            for sc in scal.get(g, []): a(sc)
            items = sched[k][g]
            for it in items:
                kind, idx = it
                if kind == 'd' and 'nodma' in cfg.dbg: continue
                if kind in 'kv' and 'nods' in cfg.dbg: continue
                if kind == 'e' and 'noexp' in cfg.dbg: continue
                if kind == 'c' and 'nocvt' in cfg.dbg: continue
                if kind == 'e': a(f"v_exp_f32 {vSr(u % 2, idx)}, {vSr(u % 2, idx)}")
                elif kind == 'c': a(f"v_cvt_pk_bf16_f32 {vPr(u % 2, idx)}, {vSr(u % 2, 2*idx)}, {vSr(u % 2, 2*idx+1)}")
                elif kind == 'k': a(rd_k((t + 1) % 2, (t + 1) % cfg.R, idx // 4, idx % 4))
                elif kind == 'v':
                    tt = t + 1 if k >= 2 else t
                    a(rd_v(tt % 2, tt % cfg.R, idx // 2, idx % 2))
                elif kind == 'd': a(dma('k' if idx < 4 else 'v', idx % 4))

    def tile(t, last):
        nv_after_k = sum(1 for (k, g) in vpos if k in (2, 3) and (k, g) > kpos[-1])
        for k in range(5):
            scal = {}
            if k == 0:
                scal[1] = [setm0('v', (t + 3) % cfg.R)]
            if k == 1:
                scal[7 - 1] = []
                scal[7] = ["s_waitcnt lgkmcnt(0)"]
                scal[16] = ["s_waitcnt vmcnt(16)"] if 'nodma' not in cfg.dbg else []
            if k == 2:
                scal[0] = ["s_barrier"] if 'nobar' not in cfg.dbg else []
                scal[5] = [f"s_add_u32 s{S_TOFF}, s{S_TOFF}, 16384"]
                scal[9] = [setm0('k', t % cfg.R)]
            if k == 3:
                scal[16] = [f"s_waitcnt lgkmcnt({nv_after_k})"]
            if k == 4 and last:
                scal[14] = [f"s_sub_u32 s{S_CNT}, s{S_CNT}, 1"]
                scal[15] = [f"s_cmp_lg_u32 s{S_CNT}, 0"]
            if k == 1:
                pass
            unit(t, k, scal)

    for idx, (k, g) in enumerate(vpos):
        if k >= 2: a(rd_v(0, 0, idx // 2, idx % 2))
    late(7)
    assert [x for x in issued] == [('k', 1), ('v', 1), ('k', 2), ('v', 2), ('k', 3)]
    a(f"s_waitcnt lgkmcnt({sum(1 for (k, g) in vpos if k >= 2)})")
    for kt in range(2):
        for s in range(4): a(mf_qk(0, 0, 0, kt, s))
    a(f"s_mov_b32 s{S_CNT}, {cfg.ntiles // cfg.U}")
    a("s_nop 7")
    if cfg.stamps:
        a("s_memrealtime s[68:69]"); a("s_memtime s[74:75]")
    a(".p2align 6")
    a("L_loop:")
    for t in range(cfg.U):
        tile(t, t == cfg.U - 1)
    a("s_cbranch_scc1 L_loop")
    ul = 5 * cfg.ntiles - 1
    tl, ql = divmod(ul, 5)
    for dt in range(8): a(mf_pv(tl % 2, ul % 2, ql, dt))
    a(mf_l(ul % 2, ql))
    if cfg.stamps:
        a("s_memrealtime s[70:71]"); a("s_memtime s[76:77]")

    a("L_epi:")
    a("s_waitcnt vmcnt(0) lgkmcnt(0)")
    a("s_barrier")
    if cfg.stamps: a("s_memrealtime s[98:99]"); a("s_waitcnt lgkmcnt(0)")
    a("s_nop 7")
    lq = [V_T + k for k in range(5)]
    for qt in range(5): a(f"v_accvgpr_read_b32 v{lq[qt]}, a{A_L + qt*4}")
    for qt in range(5):
        for dt in range(4, 8):
            a(f"ds_write_b128 v{V_X}, {oacc(dt, qt)} offset:{(qt*4 + dt - 4) * 1024}")
    a(f"s_mov_b64 s[{S_BAD}:{S_BAD+1}], 0")
    for qt in range(5):
        a(f"v_cmp_nle_f32 vcc, v{lq[qt]}, v{V_T+5}" if False else f"v_cmp_nge_f32 vcc, s{S_HI}, v{lq[qt]}")
        a(f"s_or_b64 s[{S_BAD}:{S_BAD+1}], s[{S_BAD}:{S_BAD+1}], vcc")
    if cfg.force_slow:
        a(f"s_mov_b64 s[{S_BAD}:{S_BAD+1}], -1")
    a(f"s_cmp_lg_u64 s[{S_BAD}:{S_BAD+1}], 0")
    a(f"s_cselect_b32 s{S_T}, 1, 0")
    xa, xb = f"v{V_T+5}", f"v{V_T+6}"
    a(f"s_mul_i32 s{S_T+1}, s{S_W}, 2560")
    a(f"s_add_u32 s{S_T+1}, s{S_T+1}, 81920")
    a(f"v_lshlrev_b32 {xa}, 3, v{V_LANE}")
    a(f"v_add_u32 {xa}, s{S_T+1}, {xa}")
    pr = V_T + 8
    for qt in range(5):
        a(f"v_mov_b32 v{pr + 2*qt}, v{V_NEGM + qt*4}")
        a(f"v_mov_b32 v{pr + 2*qt + 1}, v{lq[qt]}")
        a(f"ds_write_b64 {xa}, v[{pr+2*qt}:{pr+2*qt+1}] offset:{qt*512}")
    a(f"s_lshl_b32 s{S_T+2}, s{S_W}, 2")
    a(f"s_add_u32 s{S_T+2}, s{S_T+2}, 92160")
    a(f"v_mov_b32 {xb}, s{S_T+2}")
    a(f"v_mov_b32 v{V_T+7}, s{S_T}")
    a(f"ds_write_b32 {xb}, v{V_T+7}")
    a("s_waitcnt lgkmcnt(0)")
    a("s_barrier")
    fl = V_T + 20
    a(f"v_mov_b32 {xb}, 92160")
    a(f"ds_read_b128 v[{fl}:{fl+3}], {xb}")
    a(f"s_xor_b32 s{S_T+1}, s{S_W}, 1")
    a(f"s_mul_i32 s{S_T+2}, s{S_T+1}, 2560")
    a(f"s_add_u32 s{S_T+2}, s{S_T+2}, 81920")
    a(f"v_lshlrev_b32 {xa}, 3, v{V_LANE}")
    a(f"v_add_u32 {xa}, s{S_T+2}, {xa}")
    for qt in range(5):
        a(f"ds_read_b64 v[{pr+2*qt}:{pr+2*qt+1}], {xa} offset:{qt*512}")
    a("s_waitcnt lgkmcnt(5)")
    a(f"v_or_b32 v{fl}, v{fl}, v{fl+1}")
    a(f"v_or_b32 v{fl+2}, v{fl+2}, v{fl+3}")
    a(f"v_or_b32 v{fl}, v{fl}, v{fl+2}")
    a("s_nop 0")
    a(f"v_readfirstlane_b32 s{S_T}, v{fl}")
    a("s_nop 3")
    a(f"s_andn2_b32 s{S_T}, s{S_T}, s{S_SLOW}")
    a(f"s_cmp_lg_u32 s{S_T}, 0")
    a("s_cbranch_scc1 L_slow")
    a(f"s_mul_i32 s{S_T+1}, s{S_T+1}, 20480")
    a(f"v_lshlrev_b32 {xb}, 4, v{V_LANE}")
    a(f"v_add_u32 {xb}, s{S_T+1}, {xb}")
    for qt in range(5):
        for dt in range(4):
            b = V_Q + (qt * 4 + dt) * 4
            a(f"ds_read_b128 v[{b}:{b+3}], {xb} offset:{(qt*4 + dt) * 1024}")
    a("s_waitcnt lgkmcnt(15)")
    fa = V_S
    fb = V_S + 10
    FA = [V_T + 20 + k for k in range(5)]
    FB = [V_T + 26 + k for k in range(5)]
    t_m = [V_S + k for k in range(5)]
    for qt in range(5):
        a(f"v_min_f32 v{t_m[qt]}, v{V_NEGM + qt*4}, v{pr + 2*qt}")
    for qt in range(5):
        a(f"v_sub_f32 v{FA[qt]}, v{t_m[qt]}, v{V_NEGM + qt*4}")
        a(f"v_sub_f32 v{FB[qt]}, v{t_m[qt]}, v{pr + 2*qt}")
    for qt in range(5):
        a(f"v_exp_f32 v{FA[qt]}, v{FA[qt]}")
        a(f"v_exp_f32 v{FB[qt]}, v{FB[qt]}")
    a("s_nop 0")
    for qt in range(5):
        a(f"v_mul_f32 v{lq[qt]}, v{lq[qt]}, v{FA[qt]}")
    for qt in range(5):
        a(f"v_fma_f32 v{lq[qt]}, v{pr + 2*qt + 1}, v{FB[qt]}, v{lq[qt]}")
    for qt in range(5):
        a(f"v_rcp_f32 v{lq[qt]}, v{lq[qt]}")
    a("s_nop 0")
    PA = [V_S + 2 * k for k in range(5)]
    PB = [V_S + 10 + 2 * k for k in range(5)]
    for qt in range(5):
        a(f"v_mul_f32 v{PA[qt]}, v{FA[qt]}, v{lq[qt]}")
        a(f"v_mul_f32 v{PB[qt]}, v{FB[qt]}, v{lq[qt]}")
    pol = (" " + cfg.o_pol) if cfg.o_pol else ""
    nrd = 20
    for qt in range(5):
        a(f"s_waitcnt lgkmcnt({min(15, 16 - 4*qt) if qt < 4 else 0})")
        for dt in range(4):
            o = V_OOWN + (qt * 4 + dt) * 4
            r = V_Q + (qt * 4 + dt) * 4
            for h in range(2):
                a(f"v_pk_mul_f32 v[{o+2*h}:{o+2*h+1}], v[{o+2*h}:{o+2*h+1}], v[{PA[qt]}:{PA[qt]+1}] op_sel_hi:[1,0]")
            for h in range(2):
                a(f"v_pk_fma_f32 v[{o+2*h}:{o+2*h+1}], v[{r+2*h}:{r+2*h+1}], v[{PB[qt]}:{PB[qt]+1}], v[{o+2*h}:{o+2*h+1}] op_sel_hi:[1,0,1]")
        for e in range(2):
            ox = V_OOWN + (qt * 4 + 2 * e) * 4
            oy = ox + 4
            d = V_Q + (qt * 4 + 2 * e) * 4
            a(f"v_cvt_pk_bf16_f32 v{d}, v{ox}, v{ox+1}")
            a(f"v_cvt_pk_bf16_f32 v{d+1}, v{ox+2}, v{ox+3}")
            a(f"v_cvt_pk_bf16_f32 v{d+2}, v{oy}, v{oy+1}")
            a(f"v_cvt_pk_bf16_f32 v{d+3}, v{oy+2}, v{oy+3}")
        a("s_nop 0")
        for e in range(2):
            d = V_Q + (qt * 4 + 2 * e) * 4
            a(f"v_permlane16_swap_b32 v{d}, v{d+2}")
            a(f"v_permlane16_swap_b32 v{d+1}, v{d+3}")
        for e in range(2):
            d = V_Q + (qt * 4 + 2 * e) * 4
            a(f"buffer_store_dwordx4 v[{d}:{d+3}], v{V_OOFF}, s[{SRD_O}:{SRD_O+3}], s{S_QT+qt} offen offset:{e*64}{pol}")
    if cfg.stamps:
        a("s_waitcnt vmcnt(0)")
        a("s_memrealtime s[72:73]")
        a("s_waitcnt lgkmcnt(0)")
        a("s_mov_b32 s80, s64"); a("s_and_b32 s81, s65, 0xffff"); a("s_mov_b32 s82, 0x100000"); a("s_mov_b32 s83, 0x20000")
        a("s_lshl_b32 s84, s2, 2"); a(f"s_add_u32 s84, s84, s{S_W}"); a("s_lshl_b32 s84, s84, 6")
        a("s_sub_u32 s76, s76, s74")
        stl = (66, 68, 70, 72, 76, 88, 90, 92, 94, 96, 98)
        for k, sr in enumerate(stl):
            a(f"v_mov_b32 v{V_T+k}, s{sr}")
        a(f"v_mov_b32 v{V_T+15}, s84")
        a(f"v_cmp_eq_u32 vcc, 0, v{V_LANE}")
        a("s_and_saveexec_b64 s[86:87], vcc")
        for k in range(len(stl)):
            a(f"buffer_store_dword v{V_T+k}, v{V_T+15}, s[80:83], 0 offen offset:{4*k}")
        a("s_waitcnt vmcnt(0)")
    a("L_done:")
    a("s_endpgm")

    a("L_slow:")
    a("s_waitcnt vmcnt(0) lgkmcnt(0)")
    a(f"s_mov_b32 s{S_SLOW}, 1")
    zero_acc()
    for qt in range(5):
        for r in range(4): a(f"v_mov_b32 v{V_NEGM + qt*4 + r}, 0x7f800000")
    a(f"s_lshl_b32 s{S_TOFF}, s{S_W}, 12")
    a(f"s_mov_b32 s{S_CNT}, {cfg.ntiles}")
    a("L_slow_loop:")
    a("s_waitcnt lgkmcnt(0)")
    a("s_barrier")
    issue_tile(0, 'kv')
    a(f"s_add_u32 s{S_TOFF}, s{S_TOFF}, 16384")
    a("s_waitcnt vmcnt(0)")
    a("s_barrier")
    for kt in range(2):
        for s in range(4): a(rd_k(0, 0, kt, s))
    a("s_waitcnt lgkmcnt(0)")
    for dt in range(8):
        for kk in range(2): a(rd_v(0, 0, dt, kk))
        if dt == 3: a("s_waitcnt lgkmcnt(0)")
    a("s_waitcnt lgkmcnt(0)")
    T = V_T
    for qt in range(5):
        for kt in range(2):
            for s in range(4): a(mf_qk(0, 0, qt, kt, s, cinit="0"))
        a("s_nop 7"); a("s_nop 1")
        S0 = V_S
        a(f"v_max3_f32 v{T}, v{S0}, v{S0+1}, v{S0+2}")
        a(f"v_max3_f32 v{T}, v{T}, v{S0+3}, v{S0+4}")
        a(f"v_max3_f32 v{T}, v{T}, v{S0+5}, v{S0+6}")
        a(f"v_max_f32 v{T}, v{T}, v{S0+7}")
        a(f"v_mov_b32 v{T+1}, v{T}")
        a("s_nop 1")
        a(f"v_permlane16_swap_b32 v{T}, v{T+1}")
        a("s_nop 1")
        a(f"v_max_f32 v{T}, v{T}, v{T+1}")
        a(f"v_mov_b32 v{T+1}, v{T}")
        a("s_nop 1")
        a(f"v_permlane32_swap_b32 v{T}, v{T+1}")
        a("s_nop 1")
        a(f"v_max_f32 v{T}, v{T}, v{T+1}")
        nm = V_NEGM + qt * 4
        a(f"v_sub_f32 v{T}, 0, v{T}")
        a(f"v_min_f32 v{T}, v{T}, v{nm}")
        a(f"v_sub_f32 v{T+2}, v{T}, v{nm}")
        a(f"v_exp_f32 v{T+2}, v{T+2}")
        for r in range(8): a(f"v_add_f32 v{S0+r}, v{S0+r}, v{T}")
        for r in range(8): a(f"v_exp_f32 v{S0+r}, v{S0+r}")
        for r in range(4): a(f"v_mov_b32 v{nm+r}, v{T}")
        for r in range(4): a(f"v_cvt_pk_bf16_f32 {vPr(0, r)}, v{S0+2*r}, v{S0+2*r+1}")
        for dt in range(4):
            o = V_OOWN + (qt * 4 + dt) * 4
            for r in range(4): a(f"v_mul_f32 v{o+r}, v{o+r}, v{T+2}")
        for k in range(16):
            ar = A_OSND + qt * 16 + k
            a(f"v_accvgpr_read_b32 v{T+4+k}, a{ar}")
        a(f"v_accvgpr_read_b32 v{T+3}, a{A_L + qt*4}")
        for k in range(16): a(f"v_mul_f32 v{T+4+k}, v{T+4+k}, v{T+2}")
        a(f"v_mul_f32 v{T+3}, v{T+3}, v{T+2}")
        for k in range(16):
            ar = A_OSND + qt * 16 + k
            a(f"v_accvgpr_write_b32 a{ar}, v{T+4+k}")
        a(f"v_accvgpr_write_b32 a{A_L + qt*4}, v{T+3}")
        a("s_nop 1")
        for dt in range(8): a(mf_pv(0, 0, qt, dt))
        a(mf_l(0, qt))
    a(f"s_sub_u32 s{S_CNT}, s{S_CNT}, 1")
    a(f"s_cmp_lg_u32 s{S_CNT}, 0")
    a("s_cbranch_scc1 L_slow_loop")
    a("s_nop 7")
    a("s_branch L_epi")
    return L

HEADER = """; Kernarg layout for this problem (48 bytes, ptrs only, base s[0:1]):
; @launch grid=(256,1,1) block=(256,1,1) lds={lds}
.amdgcn_target "amdgcn-amd-amdhsa--gfx950"
.text
.globl {name}
.p2align 8
.type {name},@function
{name}:
"""
FOOTER = """
.section .rodata,"a"
.p2align 6
.amdhsa_kernel {name}
  .amdhsa_next_free_vgpr 512
  .amdhsa_next_free_sgpr 102
  .amdhsa_accum_offset 256
  .amdhsa_group_segment_fixed_size 0
  .amdhsa_kernarg_size 48
  .amdhsa_user_sgpr_count 2
  .amdhsa_user_sgpr_kernarg_segment_ptr 1
  .amdhsa_system_sgpr_workgroup_id_x 1
  .amdhsa_float_denorm_mode_32 3
.end_amdhsa_kernel
"""
META = """.amdgpu_metadata
---
amdhsa.version: [1, 2]
amdhsa.kernels:
  - .name: {name}
    .symbol: {name}.kd
    .kernarg_segment_size: 48
    .kernarg_segment_align: 8
    .group_segment_fixed_size: 0
    .private_segment_fixed_size: 0
    .wavefront_size: 64
    .sgpr_count: 102
    .vgpr_count: 512
    .max_flat_workgroup_size: 256
    .args:
      - {{.name: kernargs, .size: 48, .offset: 0, .value_kind: by_value}}
...
.end_amdgpu_metadata
"""

def render(cfg, meta=False):
    body = gen(cfg)
    out = HEADER.format(name=NAME, lds=cfg.lds)
    for l in body:
        out += (l if l.endswith(":") or l.startswith(".") else "    " + l) + "\n"
    out += FOOTER.format(name=NAME)
    if meta: out += META.format(name=NAME)
    return out

if __name__ == "__main__":
    import argparse, subprocess
    ap = argparse.ArgumentParser()
    ap.add_argument("-o", default="k.s")
    ap.add_argument("--kv", default=""); ap.add_argument("--q", default=""); ap.add_argument("--op", default="")
    ap.add_argument("--stamps", action="store_true"); ap.add_argument("--slow", action="store_true")
    ap.add_argument("--meta", action="store_true")
    ap.add_argument("--dbg", default="")
    ap.add_argument("--nqf", type=int, default=2)
    ap.add_argument("--po", default="")
    args = ap.parse_args()
    cfg = Cfg(); cfg.kv_pol = args.kv; cfg.q_pol = args.q; cfg.o_pol = args.op
    cfg.dbg = tuple(x for x in args.dbg.split(",") if x)
    cfg.nq_first = args.nqf
    if args.po:
        parts = [('k', 1), ('v', 1), ('k', 2), ('v', 2), ('k', 3)]
        cfg.pro_order = [(int(c), w, sl) for c, (w, sl) in zip(args.po, parts)]
    cfg.stamps = args.stamps; cfg.force_slow = args.slow
    open(args.o, "w").write(render(cfg, args.meta))
    if args.meta:
        r = subprocess.run(["clang", "-x", "assembler", "-target", "amdgcn-amd-amdhsa", "-mcpu=gfx950",
                            args.o, "-o", args.o[:-2] + ".co"], capture_output=True, text=True)
        if r.returncode: print(r.stderr[:4000]); sys.exit(1)
```

```python
import sys, math

NAME = "standalone__gqa_softmax__near_ridge_kernel"

class Cfg:
    kv_pol = ""
    q_pol = ""
    o_pol = ""
    stamps = False
    ntiles = 32
    U = 4
    R = 4
    force_slow = False
    lds = 131072
    rot = 0
    nq_first = 2
    pro_order = [(3, 'k', 1), (4, 'v', 1), (5, 'k', 2), (6, 'v', 2), (7, 'k', 3)]
    dbg = ()

def gen(cfg):
    L = []
    a = L.append
    V_OOWN = 0
    V_Q = 80
    V_NEGM = 160
    V_S = 180
    V_P = 196
    V_AK = 204
    V_AV = 208
    V_DV = 216
    V_T = 218
    V_LANE = 252
    V_QOFF = 253
    V_OOFF = 254
    V_X = 255
    A_OSND = 0
    A_L = 80
    A_KF = 100
    A_VF = 164
    A_ONE = 228
    S_W = 3
    SRD_K, SRD_V, SRD_Q, SRD_O = 12, 16, 20, 24
    S_TOFF = 28
    S_M0K = 32
    S_M0V = 36
    S_QT = 40
    S_CNT = 45
    S_J = 46
    S_I = 47
    S_C = 48
    S_HI = 50
    S_SLOW = 51
    S_BAD = 52
    S_T = 54
    S_J128 = 60

    def vq(qt, s): b = V_Q + (qt * 4 + s) * 4; return f"v[{b}:{b+3}]"
    def vnegm(qt): b = V_NEGM + qt * 4; return f"v[{b}:{b+3}]"
    def vS(buf, kt): b = V_S + buf * 8 + kt * 4; return f"v[{b}:{b+3}]"
    def vSr(buf, r): return f"v{V_S + buf * 8 + r}"
    def vP(buf): b = V_P + buf * 4; return f"v[{b}:{b+3}]"
    def vPr(buf, r): return f"v{V_P + buf * 4 + r}"
    def aKF(buf, kt, s): b = A_KF + buf * 32 + (kt * 4 + s) * 4; return f"a[{b}:{b+3}]"
    def aVF(buf, dt): b = A_VF + buf * 32 + dt * 4; return f"a[{b}:{b+3}]"
    def aVFh(buf, dt, kk): b = A_VF + buf * 32 + dt * 4 + kk * 2; return f"a[{b}:{b+1}]"
    def oacc(dt, qt):
        if dt < 4: b = V_OOWN + (qt * 4 + dt) * 4; return f"v[{b}:{b+3}]"
        b = A_OSND + (qt * 4 + dt - 4) * 4; return f"a[{b}:{b+3}]"
    def aL(qt): b = A_L + qt * 4; return f"a[{b}:{b+3}]"
    aONE = f"a[{A_ONE}:{A_ONE+3}]"
    MF = "v_mfma_f32_16x16x32_bf16"

    def mf_qk(kbuf, sbuf, qt, kt, s, cinit=None):
        c = vS(sbuf, kt) if s else (vnegm(qt) if cinit is None else cinit)
        return f"{MF} {vS(sbuf, kt)}, {aKF(kbuf, kt, s)}, {vq(qt, s)}, {c}"
    def mf_pv(vbuf, pbuf, qt, dt):
        return f"{MF} {oacc(dt, qt)}, {aVF(vbuf, dt)}, {vP(pbuf)}, {oacc(dt, qt)}"
    def mf_l(pbuf, qt):
        return f"{MF} {aL(qt)}, {aONE}, {vP(pbuf)}, {aL(qt)}"
    def rd_k(buf, slot, kt, s):
        return f"ds_read_b128 {aKF(buf, kt, s)}, v{V_AK + s} offset:{slot * 16384 + kt * 4096}"
    def rd_v(buf, slot, dt, kk):
        return f"ds_read_b64_tr_b16 {aVFh(buf, dt, kk)}, v{V_AV + dt} offset:{slot * 16384 + kk * 4096}"
    def dma(which, p):
        srd = SRD_K if which == 'k' else SRD_V
        pol = (" " + cfg.kv_pol) if cfg.kv_pol else ""
        return f"buffer_load_dwordx4 v{V_DV + (p & 1)}, s[{srd}:{srd+3}], s{S_TOFF} offen offset:{p * 1024}{pol} lds"
    def setm0(which, slot):
        return f"s_mov_b32 m0, s{(S_M0K if which == 'k' else S_M0V) + slot}"

    a("s_cmp_ge_u32 s2, 256")
    a("s_cbranch_scc1 L_done")
    a("s_load_dwordx4 s[4:7], s[0:1], 0")
    a("s_load_dwordx4 s[8:11], s[0:1], 16")
    if cfg.stamps:
        a(f"s_load_dwordx2 s[64:65], s[0:1], {32 if cfg.stamps == 2 else 40}")
        a("s_memrealtime s[66:67]")
    a(f"v_lshrrev_b32 v{V_T}, 6, v0")
    a(f"v_and_b32 v{V_LANE}, 63, v0")
    a(f"v_readfirstlane_b32 s{S_W}, v{V_T}")
    t15, tg, t0, t1, t2, t3 = [f"v{V_T + k}" for k in range(1, 7)]
    a(f"v_and_b32 {t15}, 15, v{V_LANE}")
    a(f"v_lshrrev_b32 {tg}, 4, v{V_LANE}")
    a(f"s_lshr_b32 s{S_I}, s{S_W}, 1")
    a(f"s_and_b32 s{S_J}, s{S_W}, 1")
    a(f"s_lshr_b32 s{S_T}, s2, 4")
    a(f"s_lshl_b32 s{S_T}, s{S_T}, 3")
    a(f"s_and_b32 s{S_T+1}, s2, 7")
    a(f"s_add_u32 s{S_T}, s{S_T}, s{S_T+1}")
    a(f"s_lshr_b32 s{S_T+1}, s2, 3")
    a(f"s_and_b32 s{S_T+1}, s{S_T+1}, 1")
    a(f"s_lshl_b32 s{S_T+2}, s{S_T}, 1")
    a(f"s_add_u32 s{S_T+1}, s{S_T+2}, s{S_T+1}")
    a(f"s_mul_i32 s{S_T+1}, s{S_T+1}, 40960")
    a(f"s_mul_i32 s{S_T+2}, s{S_I}, 20480")
    a(f"s_add_u32 s{S_T+1}, s{S_T+1}, s{S_T+2}")
    a(f"s_lshl_b32 s{S_T}, s{S_T}, 19")
    a(f"v_lshlrev_b32 {t0}, 8, {t15}")
    a(f"v_lshl_add_u32 v{V_QOFF}, {tg}, 4, {t0}")
    a(f"v_lshlrev_b32 {t0}, 1, {tg}")
    a(f"v_xor_b32 {t0}, {t0}, {t15}")
    a(f"v_lshlrev_b32 {t0}, 4, {t0}")
    a(f"v_lshl_add_u32 v{V_DV}, {tg}, 8, {t0}")
    a(f"v_xor_b32 v{V_DV+1}, 128, v{V_DV}")
    for q in range(5): a(f"s_mov_b32 s{S_QT+q}, {q * 4096}")
    a(f"s_lshl_b32 s{S_TOFF}, s{S_W}, 12")
    for sl in range(cfg.R):
        a(f"s_add_u32 s{S_M0K+sl}, s{S_TOFF}, {sl * 16384}")
        a(f"s_add_u32 s{S_M0V+sl}, s{S_TOFF}, {65536 + sl * 16384}")
    a("s_waitcnt lgkmcnt(0)")
    if cfg.stamps: a("s_memrealtime s[88:89]")
    a(f"s_add_u32 s{SRD_Q}, s4, s{S_T+1}"); a(f"s_addc_u32 s{SRD_Q+1}, s5, 0")
    a(f"s_and_b32 s{SRD_Q+1}, s{SRD_Q+1}, 0xffff")
    a(f"s_mov_b32 s{SRD_Q+2}, 20480"); a(f"s_mov_b32 s{SRD_Q+3}, 0x20000")
    a(f"s_add_u32 s{SRD_K}, s6, s{S_T}"); a(f"s_addc_u32 s{SRD_K+1}, s7, 0")
    a(f"s_and_b32 s{SRD_K+1}, s{SRD_K+1}, 0xffff")
    a(f"s_mov_b32 s{SRD_K+2}, 524288"); a(f"s_mov_b32 s{SRD_K+3}, 0x20000")
    def issue_part(which, slot):
        a(setm0(which, slot)); a("s_nop 0")
        for p in range(4): a(dma(which, p))
    def issue_tile(slot, parts):
        for which in parts: issue_part(which, slot)
    issue_part('k', 0)
    pol = (" " + cfg.q_pol) if cfg.q_pol else ""
    def load_q(qt):
        for s in range(4):
            a(f"buffer_load_dwordx4 {vq(qt, s)}, v{V_QOFF}, s[{SRD_Q}:{SRD_Q+3}], s{S_QT+qt} offen offset:{s*64}{pol}")
    for qt in range(cfg.nq_first): load_q(qt)
    a(f"s_add_u32 s{SRD_V}, s8, s{S_T}"); a(f"s_addc_u32 s{SRD_V+1}, s9, 0")
    a(f"s_and_b32 s{SRD_V+1}, s{SRD_V+1}, 0xffff")
    a(f"s_mov_b32 s{SRD_V+2}, 524288"); a(f"s_mov_b32 s{SRD_V+3}, 0x20000")
    a(f"s_add_u32 s{SRD_O}, s10, s{S_T+1}"); a(f"s_addc_u32 s{SRD_O+1}, s11, 0")
    a(f"s_and_b32 s{SRD_O+1}, s{SRD_O+1}, 0xffff")
    a(f"s_mov_b32 s{SRD_O+2}, 20480"); a(f"s_mov_b32 s{SRD_O+3}, 0x20000")
    a(f"s_lshl_b32 s{S_T}, s{S_J}, 13")
    a(f"v_and_b32 {t0}, 7, {t15}")
    a(f"v_lshlrev_b32 {t0}, 1, {t0}")
    a(f"v_xor_b32 {t0}, {t0}, {tg}")
    a(f"v_lshlrev_b32 {t0}, 4, {t0}")
    a(f"v_lshl_add_u32 {t0}, {t15}, 8, {t0}")
    a(f"v_add_u32 v{V_AK}, s{S_T}, {t0}")
    for s in range(1, 4): a(f"v_xor_b32 v{V_AK+s}, {s*64}, v{V_AK}")
    a(f"v_lshrrev_b32 {t0}, 2, {t15}")
    a(f"v_lshl_add_u32 {t0}, {tg}, 2, {t0}")
    a(f"v_and_b32 {t1}, 7, {t0}")
    a(f"v_lshlrev_b32 {t1}, 1, {t1}")
    a(f"v_bfe_u32 {t2}, {t15}, 1, 1")
    a(f"v_xor_b32 {t1}, {t1}, {t2}")
    a(f"v_lshlrev_b32 {t1}, 4, {t1}")
    a(f"v_lshl_add_u32 {t1}, {t0}, 8, {t1}")
    a(f"v_and_b32 {t2}, 1, {t15}")
    a(f"v_lshl_add_u32 {t1}, {t2}, 3, {t1}")
    a(f"s_lshl_b32 s{S_J128}, s{S_J}, 7")
    a(f"s_add_u32 s{S_T}, s{S_T}, 65536")
    a(f"v_add_u32 {t1}, s{S_T}, {t1}")
    a(f"v_xor_b32 v{V_AV}, s{S_J128}, {t1}")
    for dt in range(1, 8): a(f"v_xor_b32 v{V_AV+dt}, {dt*32}, v{V_AV}")
    a(f"v_and_b32 {t0}, 1, {tg}")
    a(f"v_lshlrev_b32 {t0}, 5, {t0}")
    a(f"v_lshrrev_b32 {t1}, 1, {tg}")
    a(f"v_lshl_add_u32 {t0}, {t1}, 4, {t0}")
    a(f"v_lshl_add_u32 {t0}, {t15}, 8, {t0}")
    a(f"v_add_u32 v{V_OOFF}, s{S_J128}, {t0}")
    a(f"s_mul_i32 s{S_T}, s{S_W}, 20480")
    a(f"v_lshlrev_b32 {t0}, 4, v{V_LANE}")
    a(f"v_add_u32 v{V_X}, s{S_T}, {t0}")
    cval = math.log2(math.e) / math.sqrt(128.0)
    import struct
    cbits = struct.unpack("<I", struct.pack("<f", cval))[0]
    a(f"s_mov_b32 s{S_C}, {cbits:#x}"); a(f"s_mov_b32 s{S_C+1}, {cbits:#x}")
    a(f"s_mov_b32 s{S_HI}, 0x4e800000")
    a(f"s_mov_b32 s{S_SLOW}, 0")
    def zero_acc():
        for r in range(0, 80, 2): a(f"v_mov_b64 v[{V_OOWN+r}:{V_OOWN+r+1}], 0")
        for r in range(100): a(f"v_accvgpr_write_b32 a{A_OSND+r}, 0")
    zero_acc()
    for r in range(32): a(f"v_accvgpr_write_b32 a{A_VF+32+r}, 0")
    a(f"v_mov_b32 {t0}, 0x3f803f80")
    for r in range(4): a(f"v_accvgpr_write_b32 a{A_ONE+r}, {t0}")
    for r in range(4): a(f"v_mov_b32 {vPr(1, r)}, 0")
    if cfg.stamps: a("s_memrealtime s[90:91]")
    for qt in range(cfg.nq_first, 5): load_q(qt)
    issue_part('v', 0)
    order_after = cfg.pro_order
    issued = []
    def prescale(qt):
        for r in range(16):
            q = V_Q + qt * 16 + r
            tb = V_T + 8 + 2 * (r % 4)
            a(f"v_lshlrev_b32 v{tb}, 16, v{q}")
            a(f"v_and_b32 v{tb+1}, 0xffff0000, v{q}")
            a(f"v_pk_mul_f32 v[{tb}:{tb+1}], v[{tb}:{tb+1}], s[{S_C}:{S_C+1}]")
            a(f"v_cvt_pk_bf16_f32 v{q}, v{tb}, v{tb+1}")
    def late(point):
        for (pt, which, slot) in order_after:
            if pt == point:
                if which == 'k': a(f"s_add_u32 s{S_TOFF}, s{S_TOFF}, 16384")
                issue_part(which, slot); issued.append((which, slot))
    for qt in range(5):
        a(f"s_waitcnt vmcnt({4 * (4 - qt) + 4 + 4 * len(issued)})")
        if cfg.stamps and qt == 0: a("s_memrealtime s[92:93]")
        prescale(qt)
        late(qt)
    if cfg.stamps: a("s_memrealtime s[94:95]")
    a("s_barrier")
    if cfg.stamps: a("s_memrealtime s[96:97]"); a("s_waitcnt lgkmcnt(0)")
    for kt in range(2):
        for s in range(4): a(rd_k(0, 0, kt, s))
    a("s_waitcnt lgkmcnt(4)")
    tq = [V_S, V_S + 4, V_S + 8, V_S + 12, V_T + 16]
    for qt in range(5):
        for s in range(4):
            c = "0" if s == 0 else f"v[{tq[qt]}:{tq[qt]+3}]"
            a(f"{MF} v[{tq[qt]}:{tq[qt]+3}], {aKF(0, 0, s)}, {vq(qt, s)}, {c}")
    late(5)
    a(f"s_waitcnt vmcnt({4 * len(issued)})")
    a("s_barrier")
    late(6)
    mx = [V_T + 20 + k for k in range(5)]
    my = [V_T + 25 + k for k in range(5)]
    a("s_nop 3")
    for qt in range(5):
        a(f"v_max3_f32 v{mx[qt]}, v{tq[qt]}, v{tq[qt]+1}, v{tq[qt]+2}")
    for qt in range(5):
        a(f"v_max_f32 v{mx[qt]}, v{mx[qt]}, v{tq[qt]+3}")
    for qt in range(5): a(f"v_mov_b32 v{my[qt]}, v{mx[qt]}")
    a("s_nop 0")
    for qt in range(5): a(f"v_permlane16_swap_b32 v{mx[qt]}, v{my[qt]}")
    for qt in range(5): a(f"v_max_f32 v{mx[qt]}, v{mx[qt]}, v{my[qt]}")
    for qt in range(5): a(f"v_mov_b32 v{my[qt]}, v{mx[qt]}")
    a("s_nop 0")
    for qt in range(5): a(f"v_permlane32_swap_b32 v{mx[qt]}, v{my[qt]}")
    for qt in range(5): a(f"v_max_f32 v{mx[qt]}, v{mx[qt]}, v{my[qt]}")
    for qt in range(5):
        for r in range(4): a(f"v_sub_f32 v{V_NEGM + qt*4 + r}, 0, v{mx[qt]}")

    base = [[('e', 0)], [('e', 1)], [('c', 0)], [], [('e', 2)], [('e', 3)], [('c', 1)], [],
            [('e', 4)], [('e', 5)], [('c', 2)], [], [('e', 6)], [('e', 7)], [('c', 3)], [], []]
    sched = [[list(g) for g in base] for k in range(5)]
    def put(k, g, it): sched[k][g].append(it)
    kpos = [(2, 2), (2, 3), (2, 6), (2, 7), (2, 10), (2, 14), (2, 15), (3, 2)]
    for idx, (k, g) in enumerate(kpos): put(k, g, ('k', idx))
    vpos = [(3, 6), (3, 7), (3, 10), (3, 11), (3, 14), (4, 2), (4, 3), (4, 6),
            (4, 10), (4, 11), (4, 14), (0, 2), (0, 6), (0, 7), (0, 10), (0, 14)]
    for idx, (k, g) in enumerate(vpos): put(k, g, ('v', idx))
    dpos = [(2, 11), (3, 3), (3, 15), (4, 7), (0, 3), (0, 15), (1, 7), (1, 15)]
    for idx, (k, g) in enumerate(dpos): put(k, g, ('d', idx))
    order = {'k': 0, 'v': 0, 'd': 0, 'e': 1, 'c': 1}
    for k in range(5):
        for g in range(17): sched[k][g].sort(key=lambda it: order[it[0]])

    def unit(t, k, scal):
        u = 5 * t + k
        un = u + 1; tn, qn = divmod(un, 5)
        up = u - 1; tp, qp = divmod(up, 5)
        mf = []
        for kt in range(2):
            for s in range(4): mf.append(mf_qk(tn % 2, un % 2, qn, kt, s))
        for dt in range(8): mf.append(mf_pv(tp % 2, up % 2, qp, dt))
        mf.append(mf_l(up % 2, qp))
        for g in range(17):
            a(mf[g])
            for sc in scal.get(g, []): a(sc)
            items = sched[k][g]
            for it in items:
                kind, idx = it
                if kind == 'd' and 'nodma' in cfg.dbg: continue
                if kind in 'kv' and 'nods' in cfg.dbg: continue
                if kind == 'e' and 'noexp' in cfg.dbg: continue
                if kind == 'c' and 'nocvt' in cfg.dbg: continue
                if kind == 'e': a(f"v_exp_f32 {vSr(u % 2, idx)}, {vSr(u % 2, idx)}")
                elif kind == 'c': a(f"v_cvt_pk_bf16_f32 {vPr(u % 2, idx)}, {vSr(u % 2, 2*idx)}, {vSr(u % 2, 2*idx+1)}")
                elif kind == 'k': a(rd_k((t + 1) % 2, (t + 1) % cfg.R, idx // 4, idx % 4))
                elif kind == 'v':
                    tt = t + 1 if k >= 2 else t
                    a(rd_v(tt % 2, tt % cfg.R, idx // 2, idx % 2))
                elif kind == 'd': a(dma('k' if idx < 4 else 'v', idx % 4))

    def tile(t, last):
        nv_after_k = sum(1 for (k, g) in vpos if k in (2, 3) and (k, g) > kpos[-1])
        for k in range(5):
            scal = {}
            if k == 0:
                scal[1] = [setm0('v', (t + 3) % cfg.R)]
            if k == 1:
                scal[7 - 1] = []
                scal[7] = ["s_waitcnt lgkmcnt(0)"]
                scal[16] = ["s_waitcnt vmcnt(16)"] if 'nodma' not in cfg.dbg else []
            if k == 2:
                scal[0] = ["s_barrier"] if 'nobar' not in cfg.dbg else []
                scal[5] = [f"s_add_u32 s{S_TOFF}, s{S_TOFF}, 16384"]
                scal[9] = [setm0('k', t % cfg.R)]
            if k == 3:
                scal[16] = [f"s_waitcnt lgkmcnt({nv_after_k})"]
            if k == 4 and last:
                scal[14] = [f"s_sub_u32 s{S_CNT}, s{S_CNT}, 1"]
                scal[15] = [f"s_cmp_lg_u32 s{S_CNT}, 0"]
            if k == 1:
                pass
            unit(t, k, scal)

    for idx, (k, g) in enumerate(vpos):
        if k >= 2: a(rd_v(0, 0, idx // 2, idx % 2))
    late(7)
    assert [x for x in issued] == [('k', 1), ('v', 1), ('k', 2), ('v', 2), ('k', 3)]
    a(f"s_waitcnt lgkmcnt({sum(1 for (k, g) in vpos if k >= 2)})")
    for kt in range(2):
        for s in range(4): a(mf_qk(0, 0, 0, kt, s))
    a(f"s_mov_b32 s{S_CNT}, {cfg.ntiles // cfg.U}")
    a("s_nop 7")
    if cfg.stamps:
        a("s_memrealtime s[68:69]"); a("s_memtime s[74:75]")
    a(".p2align 6")
    a("L_loop:")
    for t in range(cfg.U):
        tile(t, t == cfg.U - 1)
    a("s_cbranch_scc1 L_loop")
    ul = 5 * cfg.ntiles - 1
    tl, ql = divmod(ul, 5)
    for dt in range(8): a(mf_pv(tl % 2, ul % 2, ql, dt))
    a(mf_l(ul % 2, ql))
    if cfg.stamps:
        a("s_memrealtime s[70:71]"); a("s_memtime s[76:77]")

    a("L_epi:")
    a("s_waitcnt vmcnt(0) lgkmcnt(0)")
    a("s_barrier")
    if cfg.stamps: a("s_memrealtime s[98:99]"); a("s_waitcnt lgkmcnt(0)")
    a("s_nop 7")
    lq = [V_T + k for k in range(5)]
    for qt in range(5): a(f"v_accvgpr_read_b32 v{lq[qt]}, a{A_L + qt*4}")
    for qt in range(5):
        for dt in range(4, 8):
            a(f"ds_write_b128 v{V_X}, {oacc(dt, qt)} offset:{(qt*4 + dt - 4) * 1024}")
    a(f"s_mov_b64 s[{S_BAD}:{S_BAD+1}], 0")
    for qt in range(5):
        a(f"v_cmp_nle_f32 vcc, v{lq[qt]}, v{V_T+5}" if False else f"v_cmp_nge_f32 vcc, s{S_HI}, v{lq[qt]}")
        a(f"s_or_b64 s[{S_BAD}:{S_BAD+1}], s[{S_BAD}:{S_BAD+1}], vcc")
    if cfg.force_slow:
        a(f"s_mov_b64 s[{S_BAD}:{S_BAD+1}], -1")
    a(f"s_cmp_lg_u64 s[{S_BAD}:{S_BAD+1}], 0")
    a(f"s_cselect_b32 s{S_T}, 1, 0")
    xa, xb = f"v{V_T+5}", f"v{V_T+6}"
    a(f"s_mul_i32 s{S_T+1}, s{S_W}, 2560")
    a(f"s_add_u32 s{S_T+1}, s{S_T+1}, 81920")
    a(f"v_lshlrev_b32 {xa}, 3, v{V_LANE}")
    a(f"v_add_u32 {xa}, s{S_T+1}, {xa}")
    pr = V_T + 8
    for qt in range(5):
        a(f"v_mov_b32 v{pr + 2*qt}, v{V_NEGM + qt*4}")
        a(f"v_mov_b32 v{pr + 2*qt + 1}, v{lq[qt]}")
        a(f"ds_write_b64 {xa}, v[{pr+2*qt}:{pr+2*qt+1}] offset:{qt*512}")
    a(f"s_lshl_b32 s{S_T+2}, s{S_W}, 2")
    a(f"s_add_u32 s{S_T+2}, s{S_T+2}, 92160")
    a(f"v_mov_b32 {xb}, s{S_T+2}")
    a(f"v_mov_b32 v{V_T+7}, s{S_T}")
    a(f"ds_write_b32 {xb}, v{V_T+7}")
    a("s_waitcnt lgkmcnt(0)")
    a("s_barrier")
    fl = V_T + 20
    a(f"v_mov_b32 {xb}, 92160")
    a(f"ds_read_b128 v[{fl}:{fl+3}], {xb}")
    a(f"s_xor_b32 s{S_T+1}, s{S_W}, 1")
    a(f"s_mul_i32 s{S_T+2}, s{S_T+1}, 2560")
    a(f"s_add_u32 s{S_T+2}, s{S_T+2}, 81920")
    a(f"v_lshlrev_b32 {xa}, 3, v{V_LANE}")
    a(f"v_add_u32 {xa}, s{S_T+2}, {xa}")
    for qt in range(5):
        a(f"ds_read_b64 v[{pr+2*qt}:{pr+2*qt+1}], {xa} offset:{qt*512}")
    a("s_waitcnt lgkmcnt(5)")
    a(f"v_or_b32 v{fl}, v{fl}, v{fl+1}")
    a(f"v_or_b32 v{fl+2}, v{fl+2}, v{fl+3}")
    a(f"v_or_b32 v{fl}, v{fl}, v{fl+2}")
    a("s_nop 0")
    a(f"v_readfirstlane_b32 s{S_T}, v{fl}")
    a("s_nop 3")
    a(f"s_andn2_b32 s{S_T}, s{S_T}, s{S_SLOW}")
    a(f"s_cmp_lg_u32 s{S_T}, 0")
    a("s_cbranch_scc1 L_slow")
    a(f"s_mul_i32 s{S_T+1}, s{S_T+1}, 20480")
    a(f"v_lshlrev_b32 {xb}, 4, v{V_LANE}")
    a(f"v_add_u32 {xb}, s{S_T+1}, {xb}")
    for qt in range(5):
        for dt in range(4):
            b = V_Q + (qt * 4 + dt) * 4
            a(f"ds_read_b128 v[{b}:{b+3}], {xb} offset:{(qt*4 + dt) * 1024}")
    a("s_waitcnt lgkmcnt(15)")
    fa = V_S
    fb = V_S + 10
    FA = [V_T + 20 + k for k in range(5)]
    FB = [V_T + 26 + k for k in range(5)]
    t_m = [V_S + k for k in range(5)]
    for qt in range(5):
        a(f"v_min_f32 v{t_m[qt]}, v{V_NEGM + qt*4}, v{pr + 2*qt}")
    for qt in range(5):
        a(f"v_sub_f32 v{FA[qt]}, v{t_m[qt]}, v{V_NEGM + qt*4}")
        a(f"v_sub_f32 v{FB[qt]}, v{t_m[qt]}, v{pr + 2*qt}")
    for qt in range(5):
        a(f"v_exp_f32 v{FA[qt]}, v{FA[qt]}")
        a(f"v_exp_f32 v{FB[qt]}, v{FB[qt]}")
    a("s_nop 0")
    for qt in range(5):
        a(f"v_mul_f32 v{lq[qt]}, v{lq[qt]}, v{FA[qt]}")
    for qt in range(5):
        a(f"v_fma_f32 v{lq[qt]}, v{pr + 2*qt + 1}, v{FB[qt]}, v{lq[qt]}")
    for qt in range(5):
        a(f"v_rcp_f32 v{lq[qt]}, v{lq[qt]}")
    a("s_nop 0")
    PA = [V_S + 2 * k for k in range(5)]
    PB = [V_S + 10 + 2 * k for k in range(5)]
    for qt in range(5):
        a(f"v_mul_f32 v{PA[qt]}, v{FA[qt]}, v{lq[qt]}")
        a(f"v_mul_f32 v{PB[qt]}, v{FB[qt]}, v{lq[qt]}")
    pol = (" " + cfg.o_pol) if cfg.o_pol else ""
    nrd = 20
    for qt in range(5):
        a(f"s_waitcnt lgkmcnt({min(15, 16 - 4*qt) if qt < 4 else 0})")
        for dt in range(4):
            o = V_OOWN + (qt * 4 + dt) * 4
            r = V_Q + (qt * 4 + dt) * 4
            for h in range(2):
                a(f"v_pk_mul_f32 v[{o+2*h}:{o+2*h+1}], v[{o+2*h}:{o+2*h+1}], v[{PA[qt]}:{PA[qt]+1}] op_sel_hi:[1,0]")
            for h in range(2):
                a(f"v_pk_fma_f32 v[{o+2*h}:{o+2*h+1}], v[{r+2*h}:{r+2*h+1}], v[{PB[qt]}:{PB[qt]+1}], v[{o+2*h}:{o+2*h+1}] op_sel_hi:[1,0,1]")
        for e in range(2):
            ox = V_OOWN + (qt * 4 + 2 * e) * 4
            oy = ox + 4
            d = V_Q + (qt * 4 + 2 * e) * 4
            a(f"v_cvt_pk_bf16_f32 v{d}, v{ox}, v{ox+1}")
            a(f"v_cvt_pk_bf16_f32 v{d+1}, v{ox+2}, v{ox+3}")
            a(f"v_cvt_pk_bf16_f32 v{d+2}, v{oy}, v{oy+1}")
            a(f"v_cvt_pk_bf16_f32 v{d+3}, v{oy+2}, v{oy+3}")
        a("s_nop 0")
        for e in range(2):
            d = V_Q + (qt * 4 + 2 * e) * 4
            a(f"v_permlane16_swap_b32 v{d}, v{d+2}")
            a(f"v_permlane16_swap_b32 v{d+1}, v{d+3}")
        for e in range(2):
            d = V_Q + (qt * 4 + 2 * e) * 4
            a(f"buffer_store_dwordx4 v[{d}:{d+3}], v{V_OOFF}, s[{SRD_O}:{SRD_O+3}], s{S_QT+qt} offen offset:{e*64}{pol}")
    if cfg.stamps:
        a("s_waitcnt vmcnt(0)")
        a("s_memrealtime s[72:73]")
        a("s_waitcnt lgkmcnt(0)")
        a("s_mov_b32 s80, s64"); a("s_and_b32 s81, s65, 0xffff")
        a(f"s_mov_b32 s82, {256 if cfg.stamps == 2 else 0x100000}"); a("s_mov_b32 s83, 0x20000")
        a("s_lshl_b32 s84, s2, 2"); a(f"s_add_u32 s84, s84, s{S_W}"); a("s_lshl_b32 s84, s84, 6")
        a("s_sub_u32 s76, s76, s74")
        stl = (66, 68, 70, 72, 76, 88, 90, 92, 94, 96, 98)
        if cfg.stamps == 2:
            a("s_not_b32 s100, s66")
        for k, sr in enumerate(stl):
            a(f"v_mov_b32 v{V_T+k}, s{sr}")
        a(f"v_mov_b32 v{V_T+15}, s84")
        a(f"v_cmp_eq_u32 vcc, 0, v{V_LANE}")
        a("s_and_saveexec_b64 s[86:87], vcc")
        if cfg.stamps == 2:
            a(f"v_mov_b32 v{V_T+15}, 0")
            a(f"v_mov_b32 v{V_T+16}, s100")
            for k in range(len(stl)):
                a(f"buffer_atomic_umax v{V_T+k}, v{V_T+15}, s[80:83], 0 offen offset:{4*k}")
            a(f"buffer_atomic_umax v{V_T+16}, v{V_T+15}, s[80:83], 0 offen offset:{4*12}")
        else:
            for k in range(len(stl)):
                a(f"buffer_store_dword v{V_T+k}, v{V_T+15}, s[80:83], 0 offen offset:{4*k}")
        a("s_waitcnt vmcnt(0)")
    a("L_done:")
    a("s_endpgm")

    a("L_slow:")
    a("s_waitcnt vmcnt(0) lgkmcnt(0)")
    a(f"s_mov_b32 s{S_SLOW}, 1")
    zero_acc()
    for qt in range(5):
        for r in range(4): a(f"v_mov_b32 v{V_NEGM + qt*4 + r}, 0x7f800000")
    a(f"s_lshl_b32 s{S_TOFF}, s{S_W}, 12")
    a(f"s_mov_b32 s{S_CNT}, {cfg.ntiles}")
    a("L_slow_loop:")
    a("s_waitcnt lgkmcnt(0)")
    a("s_barrier")
    issue_tile(0, 'kv')
    a(f"s_add_u32 s{S_TOFF}, s{S_TOFF}, 16384")
    a("s_waitcnt vmcnt(0)")
    a("s_barrier")
    for kt in range(2):
        for s in range(4): a(rd_k(0, 0, kt, s))
    a("s_waitcnt lgkmcnt(0)")
    for dt in range(8):
        for kk in range(2): a(rd_v(0, 0, dt, kk))
        if dt == 3: a("s_waitcnt lgkmcnt(0)")
    a("s_waitcnt lgkmcnt(0)")
    T = V_T
    for qt in range(5):
        for kt in range(2):
            for s in range(4): a(mf_qk(0, 0, qt, kt, s, cinit="0"))
        a("s_nop 7"); a("s_nop 1")
        S0 = V_S
        a(f"v_max3_f32 v{T}, v{S0}, v{S0+1}, v{S0+2}")
        a(f"v_max3_f32 v{T}, v{T}, v{S0+3}, v{S0+4}")
        a(f"v_max3_f32 v{T}, v{T}, v{S0+5}, v{S0+6}")
        a(f"v_max_f32 v{T}, v{T}, v{S0+7}")
        a(f"v_mov_b32 v{T+1}, v{T}")
        a("s_nop 1")
        a(f"v_permlane16_swap_b32 v{T}, v{T+1}")
        a("s_nop 1")
        a(f"v_max_f32 v{T}, v{T}, v{T+1}")
        a(f"v_mov_b32 v{T+1}, v{T}")
        a("s_nop 1")
        a(f"v_permlane32_swap_b32 v{T}, v{T+1}")
        a("s_nop 1")
        a(f"v_max_f32 v{T}, v{T}, v{T+1}")
        nm = V_NEGM + qt * 4
        a(f"v_sub_f32 v{T}, 0, v{T}")
        a(f"v_min_f32 v{T}, v{T}, v{nm}")
        a(f"v_sub_f32 v{T+2}, v{T}, v{nm}")
        a(f"v_exp_f32 v{T+2}, v{T+2}")
        for r in range(8): a(f"v_add_f32 v{S0+r}, v{S0+r}, v{T}")
        for r in range(8): a(f"v_exp_f32 v{S0+r}, v{S0+r}")
        for r in range(4): a(f"v_mov_b32 v{nm+r}, v{T}")
        for r in range(4): a(f"v_cvt_pk_bf16_f32 {vPr(0, r)}, v{S0+2*r}, v{S0+2*r+1}")
        for dt in range(4):
            o = V_OOWN + (qt * 4 + dt) * 4
            for r in range(4): a(f"v_mul_f32 v{o+r}, v{o+r}, v{T+2}")
        for k in range(16):
            ar = A_OSND + qt * 16 + k
            a(f"v_accvgpr_read_b32 v{T+4+k}, a{ar}")
        a(f"v_accvgpr_read_b32 v{T+3}, a{A_L + qt*4}")
        for k in range(16): a(f"v_mul_f32 v{T+4+k}, v{T+4+k}, v{T+2}")
        a(f"v_mul_f32 v{T+3}, v{T+3}, v{T+2}")
        for k in range(16):
            ar = A_OSND + qt * 16 + k
            a(f"v_accvgpr_write_b32 a{ar}, v{T+4+k}")
        a(f"v_accvgpr_write_b32 a{A_L + qt*4}, v{T+3}")
        a("s_nop 1")
        for dt in range(8): a(mf_pv(0, 0, qt, dt))
        a(mf_l(0, qt))
    a(f"s_sub_u32 s{S_CNT}, s{S_CNT}, 1")
    a(f"s_cmp_lg_u32 s{S_CNT}, 0")
    a("s_cbranch_scc1 L_slow_loop")
    a("s_nop 7")
    a("s_branch L_epi")
    return L

HEADER = """; Kernarg layout for this problem (48 bytes, ptrs only, base s[0:1]):
; @launch grid=(256,1,1) block=(256,1,1) lds={lds}
.amdgcn_target "amdgcn-amd-amdhsa--gfx950"
.text
.globl {name}
.p2align 8
.type {name},@function
{name}:
"""
FOOTER = """
.section .rodata,"a"
.p2align 6
.amdhsa_kernel {name}
  .amdhsa_next_free_vgpr 512
  .amdhsa_next_free_sgpr 102
  .amdhsa_accum_offset 256
  .amdhsa_group_segment_fixed_size 0
  .amdhsa_kernarg_size 48
  .amdhsa_user_sgpr_count 2
  .amdhsa_user_sgpr_kernarg_segment_ptr 1
  .amdhsa_system_sgpr_workgroup_id_x 1
  .amdhsa_float_denorm_mode_32 3
.end_amdhsa_kernel
"""
META = """.amdgpu_metadata
---
amdhsa.version: [1, 2]
amdhsa.kernels:
  - .name: {name}
    .symbol: {name}.kd
    .kernarg_segment_size: 48
    .kernarg_segment_align: 8
    .group_segment_fixed_size: 0
    .private_segment_fixed_size: 0
    .wavefront_size: 64
    .sgpr_count: 102
    .vgpr_count: 512
    .max_flat_workgroup_size: 256
    .args:
      - {{.name: kernargs, .size: 48, .offset: 0, .value_kind: by_value}}
...
.end_amdgpu_metadata
"""

def render(cfg, meta=False):
    body = gen(cfg)
    out = HEADER.format(name=NAME, lds=cfg.lds)
    for l in body:
        out += (l if l.endswith(":") or l.startswith(".") else "    " + l) + "\n"
    out += FOOTER.format(name=NAME)
    if meta: out += META.format(name=NAME)
    return out

if __name__ == "__main__":
    import argparse, subprocess
    ap = argparse.ArgumentParser()
    ap.add_argument("-o", default="k.s")
    ap.add_argument("--kv", default=""); ap.add_argument("--q", default=""); ap.add_argument("--op", default="")
    ap.add_argument("--stamps", action="store_true"); ap.add_argument("--slow", action="store_true")
    ap.add_argument("--meta", action="store_true")
    ap.add_argument("--dbg", default="")
    ap.add_argument("--dstamps", action="store_true")
    ap.add_argument("--nqf", type=int, default=2)
    ap.add_argument("--po", default="")
    args = ap.parse_args()
    cfg = Cfg(); cfg.kv_pol = args.kv; cfg.q_pol = args.q; cfg.o_pol = args.op
    cfg.dbg = tuple(x for x in args.dbg.split(",") if x)
    cfg.nq_first = args.nqf
    if args.po:
        parts = [('k', 1), ('v', 1), ('k', 2), ('v', 2), ('k', 3)]
        cfg.pro_order = [(int(c), w, sl) for c, (w, sl) in zip(args.po, parts)]
    cfg.stamps = 2 if args.dstamps else args.stamps; cfg.force_slow = args.slow
    open(args.o, "w").write(render(cfg, args.meta))
    if args.meta:
        r = subprocess.run(["clang", "-x", "assembler", "-target", "amdgcn-amd-amdhsa", "-mcpu=gfx950",
                            args.o, "-o", args.o[:-2] + ".co"], capture_output=True, text=True)
        if r.returncode: print(r.stderr[:4000]); sys.exit(1)
```

```python
import sys, math, struct

NAME = "standalone__gqa_softmax__near_ridge_kernel"

class Cfg:
    kv_pol = "nt"
    q_pol = ""
    o_pol = "sc0 sc1"
    stamps = 0
    force_slow = False
    dbg = ()
    D = 4
    nones = 5
    lds = 131072
    tail = True
    sched = "a"
    nq_first = 3
    qmode = "dma"
    late = "1334"

NT = 32
R = 4

def gen(cfg):
    L = []
    a = L.append
    D = cfg.D
    V_OOWN = 0
    V_Q = 80
    V_NEGM = 160
    V_S = 180
    V_P = 196
    V_AK = 204
    V_AV = 208
    V_DV = 216
    V_T = 218
    V_LS = 242
    V_LANE = 252
    V_QOFF = 253
    V_OOFF = 254
    V_X = 255
    A_OSND = 0
    A_L = 80
    A_KF = 100
    A_VF = 164
    A_ONE = 228
    S_W = 3
    SRD_K, SRD_V, SRD_Q, SRD_O = 12, 16, 20, 24
    S_TOFF = 28
    S_M0K = 32
    S_M0V = 36
    S_QT = 40
    S_CNT = 45
    S_J = 46
    S_I = 47
    S_C = 48
    S_HI = 50
    S_SLOW = 51
    S_BAD = 52
    S_T = 54
    S_J128 = 60
    S_J8K = 61
    X_L = 40960
    X_F = 46080
    ones_qt = set(range(cfg.nones))

    def vq(qt, s): b = V_Q + (qt * 4 + s) * 4; return f"v[{b}:{b+3}]"
    def vnegm(qt): b = V_NEGM + qt * 4; return f"v[{b}:{b+3}]"
    def vS(buf, kt): b = V_S + buf * 8 + kt * 4; return f"v[{b}:{b+3}]"
    def vSr(buf, r): return f"v{V_S + buf * 8 + r}"
    def vP(buf): b = V_P + buf * 4; return f"v[{b}:{b+3}]"
    def vPr(buf, r): return f"v{V_P + buf * 4 + r}"
    def aKF(buf, kt, s): b = A_KF + buf * 32 + (kt * 4 + s) * 4; return f"a[{b}:{b+3}]"
    def aVF(buf, dt): b = A_VF + buf * 32 + dt * 4; return f"a[{b}:{b+3}]"
    def aVFh(buf, dt, kk): b = A_VF + buf * 32 + dt * 4 + kk * 2; return f"a[{b}:{b+1}]"
    def oacc(dt, qt):
        if dt < 4: b = V_OOWN + (qt * 4 + dt) * 4; return f"v[{b}:{b+3}]"
        b = A_OSND + (qt * 4 + dt - 4) * 4; return f"a[{b}:{b+3}]"
    def aL(qt): b = A_L + qt * 4; return f"a[{b}:{b+3}]"
    aONE = f"a[{A_ONE}:{A_ONE+3}]"
    MF = "v_mfma_f32_16x16x32_bf16"

    def mf_qk(kbuf, sbuf, qt, kt, s, cinit=None):
        c = vS(sbuf, kt) if s else (vnegm(qt) if cinit is None else cinit)
        return f"{MF} {vS(sbuf, kt)}, {aKF(kbuf, kt, s)}, {vq(qt, s)}, {c}"
    def mf_pv(vbuf, pbuf, qt, dt):
        return f"{MF} {oacc(dt, qt)}, {aVF(vbuf, dt)}, {vP(pbuf)}, {oacc(dt, qt)}"
    def mf_l(pbuf, qt):
        return f"{MF} {aL(qt)}, {aONE}, {vP(pbuf)}, {aL(qt)}"
    def rd_k(buf, slot, kt, s):
        return f"ds_read_b128 {aKF(buf, kt, s)}, v{V_AK + s} offset:{slot * 16384 + kt * 4096}"
    def rd_v(buf, slot, dt, kk):
        return f"ds_read_b64_tr_b16 {aVFh(buf, dt, kk)}, v{V_AV + dt} offset:{slot * 16384 + kk * 4096}"
    def dma(which, p):
        srd = SRD_K if which == 'k' else SRD_V
        pol = (" " + cfg.kv_pol) if cfg.kv_pol else ""
        return f"buffer_load_dwordx4 v{V_DV + (p & 1)}, s[{srd}:{srd+3}], s{S_TOFF} offen offset:{p * 1024}{pol} lds"
    def setm0(which, slot):
        return f"s_mov_b32 m0, s{(S_M0K if which == 'k' else S_M0V) + slot}"
    def wr_x(qt, dt):
        return f"ds_write_b128 v{V_X}, {oacc(dt, qt)} offset:{(qt*4 + dt - 4) * 1024}"
    def stamp(kind, pair):
        if cfg.stamps == 5: return
        if cfg.stamps == kind or (kind == 1 and cfg.stamps == 2): a(f"s_memrealtime s[{pair}:{pair+1}]")

    a("s_cmp_ge_u32 s2, 256")
    a("s_cbranch_scc1 L_done")
    a("s_load_dwordx4 s[4:7], s[0:1], 0")
    a("s_load_dwordx4 s[8:11], s[0:1], 16")
    if cfg.stamps:
        a(f"s_load_dwordx2 s[64:65], s[0:1], {32 if cfg.stamps == 2 else 40}")
        a("s_memrealtime s[66:67]")
    a(f"v_lshrrev_b32 v{V_T}, 6, v0")
    a(f"v_and_b32 v{V_LANE}, 63, v0")
    a(f"v_readfirstlane_b32 s{S_W}, v{V_T}")
    t15, tg, t0, t1, t2, t3 = [f"v{V_T + k}" for k in range(1, 7)]
    a(f"v_and_b32 {t15}, 15, v{V_LANE}")
    a(f"v_lshrrev_b32 {tg}, 4, v{V_LANE}")
    a(f"s_lshr_b32 s{S_T}, s2, 4")
    a(f"s_lshl_b32 s{S_T}, s{S_T}, 3")
    a(f"s_and_b32 s{S_T+1}, s2, 7")
    a(f"s_add_u32 s{S_T}, s{S_T}, s{S_T+1}")
    a(f"s_lshr_b32 s{S_T+1}, s2, 3")
    a(f"s_and_b32 s{S_T+1}, s{S_T+1}, 1")
    a(f"s_lshl_b32 s{S_T+2}, s{S_T}, 1")
    a(f"s_add_u32 s{S_T+1}, s{S_T+2}, s{S_T+1}")
    a(f"s_lshr_b32 s{S_I}, s{S_W}, 1")
    a(f"s_and_b32 s{S_J}, s{S_W}, 1")
    a(f"s_mul_i32 s{S_T+1}, s{S_T+1}, 40960")
    a(f"s_mul_i32 s{S_T+2}, s{S_I}, 20480")
    a(f"s_add_u32 s{S_T+1}, s{S_T+1}, s{S_T+2}")
    a(f"s_lshl_b32 s{S_T}, s{S_T}, 19")
    a(f"v_lshlrev_b32 {t0}, 1, {tg}")
    a(f"v_xor_b32 {t0}, {t0}, {t15}")
    a(f"v_lshlrev_b32 {t0}, 4, {t0}")
    a(f"v_lshl_add_u32 v{V_DV}, {tg}, 8, {t0}")
    a(f"v_xor_b32 v{V_DV+1}, 128, v{V_DV}")
    a(f"v_lshlrev_b32 {t0}, 8, {t15}")
    a(f"v_lshl_add_u32 v{V_QOFF}, {tg}, 4, {t0}")
    for q in range(5): a(f"s_mov_b32 s{S_QT+q}, {q * 4096}")
    a(f"s_lshl_b32 s{S_TOFF}, s{S_W}, 12")
    for sl in range(R):
        a(f"s_add_u32 s{S_M0K+sl}, s{S_TOFF}, {sl * 16384}")
        a(f"s_add_u32 s{S_M0V+sl}, s{S_TOFF}, {65536 + sl * 16384}")
    a(setm0('k', 0))
    a(f"s_mov_b32 s{SRD_Q+2}, 20480"); a(f"s_mov_b32 s{SRD_Q+3}, 0x20000")
    a(f"s_mov_b32 s{SRD_K+2}, 524288"); a(f"s_mov_b32 s{SRD_K+3}, 0x20000")
    a(f"s_mov_b32 s{SRD_V+2}, 524288"); a(f"s_mov_b32 s{SRD_V+3}, 0x20000")
    a(f"s_mov_b32 s{SRD_O+2}, 20480"); a(f"s_mov_b32 s{SRD_O+3}, 0x20000")
    a("s_waitcnt lgkmcnt(0)")
    stamp(1, 88)
    a(f"s_add_u32 s{SRD_K}, s6, s{S_T}"); a(f"s_addc_u32 s{SRD_K+1}, s7, 0")
    a(f"s_and_b32 s{SRD_K+1}, s{SRD_K+1}, 0xffff")
    for p in range(4): a(dma('k', p))
    a(f"s_add_u32 s{SRD_Q}, s4, s{S_T+1}"); a(f"s_addc_u32 s{SRD_Q+1}, s5, 0")
    a(f"s_and_b32 s{SRD_Q+1}, s{SRD_Q+1}, 0xffff")
    pol = (" " + cfg.q_pol) if cfg.q_pol else ""
    def load_q(qt):
        for s in range(4):
            a(f"buffer_load_dwordx4 {vq(qt, s)}, v{V_QOFF}, s[{SRD_Q}:{SRD_Q+3}], s{S_QT+qt} offen offset:{s*64}{pol}")
    QB = 114688
    S_QM = 62
    if cfg.qmode == "dma":
        a(f"s_lshl_b32 s{S_T+3}, s{S_J}, 11")
        a(f"s_mul_i32 s{S_QM}, s{S_I}, 20480")
        a(f"s_add_u32 s{S_QM}, s{S_QM}, s{S_T+3}")
        a(f"s_add_u32 s{S_QM}, s{S_QM}, {QB}")
        qpol = (" " + cfg.q_pol) if cfg.q_pol else ""
        for qt in range(5):
            a(f"s_add_u32 m0, s{S_QM}, {qt * 4096}")
            a(f"s_add_u32 s{S_T+4}, s{S_T+3}, {qt * 4096}")
            for p in range(2):
                a(f"buffer_load_dwordx4 v{V_DV + p}, s[{SRD_Q}:{SRD_Q+3}], s{S_T+4} offen offset:{p * 1024}{qpol} lds")
    else:
        for qt in range(cfg.nq_first): load_q(qt)
    a(f"s_add_u32 s{SRD_V}, s8, s{S_T}"); a(f"s_addc_u32 s{SRD_V+1}, s9, 0")
    a(f"s_and_b32 s{SRD_V+1}, s{SRD_V+1}, 0xffff")
    a(f"s_add_u32 s{SRD_O}, s10, s{S_T+1}"); a(f"s_addc_u32 s{SRD_O+1}, s11, 0")
    a(f"s_and_b32 s{SRD_O+1}, s{SRD_O+1}, 0xffff")
    def issue_part(which, slot):
        a(setm0(which, slot)); a("s_nop 0")
        for p in range(4): a(dma(which, p))
    a(f"s_lshl_b32 s{S_J8K}, s{S_J}, 13")
    a(f"v_and_b32 {t0}, 7, {t15}")
    a(f"v_lshlrev_b32 {t0}, 1, {t0}")
    a(f"v_xor_b32 {t0}, {t0}, {tg}")
    a(f"v_lshlrev_b32 {t0}, 4, {t0}")
    a(f"v_lshl_add_u32 {t0}, {t15}, 8, {t0}")
    VM = V_T + 8
    a(f"v_mov_b32 v{VM}, {t0}")
    for s in range(1, 4): a(f"v_xor_b32 v{VM+s}, {s*64}, {t0}")
    for s in range(4): a(f"v_add_u32 v{V_AK+s}, s{S_J8K}, v{VM+s}")
    a(f"v_lshrrev_b32 {t0}, 2, {t15}")
    a(f"v_lshl_add_u32 {t0}, {tg}, 2, {t0}")
    a(f"v_and_b32 {t1}, 7, {t0}")
    a(f"v_lshlrev_b32 {t1}, 1, {t1}")
    a(f"v_bfe_u32 {t2}, {t15}, 1, 1")
    a(f"v_xor_b32 {t1}, {t1}, {t2}")
    a(f"v_lshlrev_b32 {t1}, 4, {t1}")
    a(f"v_lshl_add_u32 {t1}, {t0}, 8, {t1}")
    a(f"v_and_b32 {t2}, 1, {t15}")
    a(f"v_lshl_add_u32 {t1}, {t2}, 3, {t1}")
    a(f"s_lshl_b32 s{S_J128}, s{S_J}, 7")
    a(f"s_add_u32 s{S_T}, s{S_J8K}, 65536")
    a(f"v_add_u32 {t1}, s{S_T}, {t1}")
    a(f"v_xor_b32 v{V_AV}, s{S_J128}, {t1}")
    for dt in range(1, 8): a(f"v_xor_b32 v{V_AV+dt}, {dt*32}, v{V_AV}")
    a(f"v_and_b32 {t0}, 1, {tg}")
    a(f"v_lshlrev_b32 {t0}, 5, {t0}")
    a(f"v_lshrrev_b32 {t1}, 1, {tg}")
    a(f"v_lshl_add_u32 {t0}, {t1}, 4, {t0}")
    a(f"v_lshl_add_u32 {t0}, {t15}, 8, {t0}")
    a(f"v_add_u32 v{V_OOFF}, s{S_J128}, {t0}")
    a(f"s_mul_i32 s{S_T}, s{S_J}, 20480")
    a(f"s_lshl_b32 s{S_T+1}, s{S_I}, 16")
    a(f"s_add_u32 s{S_T}, s{S_T}, s{S_T+1}")
    a(f"v_lshlrev_b32 {t0}, 4, v{V_LANE}")
    a(f"v_add_u32 v{V_X}, s{S_T}, {t0}")
    cval = math.log2(math.e) / math.sqrt(128.0)
    cbits = struct.unpack("<I", struct.pack("<f", cval))[0]
    a(f"s_mov_b32 s{S_C}, {cbits:#x}"); a(f"s_mov_b32 s{S_C+1}, {cbits:#x}")
    a(f"s_mov_b32 s{S_HI}, 0x4e800000")
    a(f"s_mov_b32 s{S_SLOW}, 0")
    def zero_acc():
        for r in range(0, 80, 2): a(f"v_mov_b64 v[{V_OOWN+r}:{V_OOWN+r+1}], 0")
        for r in range(80): a(f"v_accvgpr_write_b32 a{A_OSND+r}, 0")
        for qt in range(5):
            if qt in ones_qt:
                for r in range(4): a(f"v_accvgpr_write_b32 a{A_L+qt*4+r}, 0")
            else:
                a(f"v_mov_b64 v[{V_LS+2*qt}:{V_LS+2*qt+1}], 0")
    zero_acc()
    for r in range(32): a(f"v_accvgpr_write_b32 a{A_VF+32+r}, 0")
    a(f"v_mov_b32 {t0}, 0x3f803f80")
    for r in range(4): a(f"v_accvgpr_write_b32 a{A_ONE+r}, {t0}")
    for r in range(0, 4, 2): a(f"v_mov_b64 v[{V_P+4+r}:{V_P+4+r+1}], 0")
    stamp(1, 90)
    parts = [('v', 0), ('k', 1), ('v', 1), ('k', 2)]
    late_pt = [int(c) for c in cfg.late]
    seq = []
    seq.append(('K0', 4))
    if cfg.qmode == "dma": seq += [(f'Q{q}', 2) for q in range(5)]
    else: seq += [(f'Q{q}', 4) for q in range(cfg.nq_first)]
    toff_tile = [0]
    def issue_named(which, n):
        while toff_tile[0] < n:
            a(f"s_add_u32 s{S_TOFF}, s{S_TOFF}, 16384"); toff_tile[0] += 1
        issue_part(which, n % R)
        seq.append((f"{which.upper()}{n}", 4))
    def wait_for(name, extra=""):
        i = [x[0] for x in seq].index(name)
        a(f"s_waitcnt vmcnt({sum(c for _, c in seq[i+1:])}){extra}")
    def late(point):
        for n, (which, tile_) in enumerate(parts):
            if late_pt[n] == point and n < nlate: issue_named(which, tile_)
    nlate = 3 if D == 3 else 4
    if cfg.qmode != "dma":
        for qt in range(cfg.nq_first, 5):
            load_q(qt); seq.append((f'Q{qt}', 4))
    late(0)
    def q_reads(qt):
        for s in range(4): a(f"ds_read_b128 {vq(qt, s)}, v{VQA+s} offset:{qt * 4096}")
    VQA = V_T + 22 - 22 + 0
    if cfg.qmode == "dma":
        VQA = V_S
        a(f"s_mul_i32 s{S_T+3}, s{S_I}, 20480")
        a(f"s_add_u32 s{S_T+3}, s{S_T+3}, {QB}")
        for s in range(4): a(f"v_add_u32 v{VQA+s}, s{S_T+3}, v{VM+s}")
        wait_for('Q0')
        a("s_barrier")
        q_reads(0)
    else:
        wait_for('K0')
        a("s_barrier")
    for s in range(4): a(f"ds_read_b128 {aKF(1, 0, s)}, v{VM+s}")
    for kt in range(2):
        for s in range(4): a(rd_k(0, 0, kt, s))
    def prescale(qt):
        for r in range(16):
            q = V_Q + qt * 16 + r
            tb = V_T + 12 + 2 * (r % 4)
            a(f"v_lshlrev_b32 v{tb}, 16, v{q}")
            a(f"v_and_b32 v{tb+1}, 0xffff0000, v{q}")
            a(f"v_pk_mul_f32 v[{tb}:{tb+1}], v[{tb}:{tb+1}], s[{S_C}:{S_C+1}]")
            a(f"v_cvt_pk_bf16_f32 v{q}, v{tb}, v{tb+1}")
    def tq(qt): return V_S + 8 + 4 * (qt % 2)
    def m0_mfma(qt):
        b = tq(qt)
        for s in range(4):
            c = "0" if s == 0 else f"v[{b}:{b+3}]"
            a(f"{MF} v[{b}:{b+3}], {aKF(1, 0, s)}, {vq(qt, s)}, {c}")
    def m0_reduce(qt):
        b = tq(qt); mx = f"v{V_T+20}"; my = f"v{V_T+21}"
        a(f"v_max3_f32 {mx}, v{b}, v{b+1}, v{b+2}")
        a(f"v_max_f32 {mx}, {mx}, v{b+3}")
        a(f"v_mov_b32 {my}, {mx}")
        a("s_nop 1")
        a(f"v_permlane16_swap_b32 {mx}, {my}")
        a(f"v_max_f32 {mx}, {mx}, {my}")
        a(f"v_mov_b32 {my}, {mx}")
        a("s_nop 1")
        a(f"v_permlane32_swap_b32 {mx}, {my}")
        a(f"v_max_f32 {mx}, {mx}, {my}")
        for r in range(4): a(f"v_sub_f32 v{V_NEGM + qt*4 + r}, 0, {mx}")
    if cfg.qmode == "dma":
        stamp(1, 92); stamp(4, 88)
        late(1)
        for qt in range(5):
            if qt < 4:
                wait_for(f'Q{qt+1}')
                a("s_barrier")
                q_reads(qt + 1)
                stamp(4, 90 + 2 * qt)
                late(qt + 2)
            if qt == 0: a("s_waitcnt lgkmcnt(12)")
            elif qt < 4: a("s_waitcnt lgkmcnt(4)")
            else: a("s_waitcnt lgkmcnt(0)")
            prescale(qt)
            m0_mfma(qt)
            if qt > 0: m0_reduce(qt - 1)
            if qt == 0: stamp(4, 98)
    else:
        for qt in range(5):
            wait_for(f'Q{qt}')
            if qt == 0: stamp(1, 92)
            stamp(4, 88 + 2 * qt)
            late(qt + 1)
            if qt == 0: a("s_waitcnt lgkmcnt(0)")
            prescale(qt)
            m0_mfma(qt)
            if qt > 0: m0_reduce(qt - 1)
            if qt == 0: stamp(4, 98)
    stamp(1, 94)
    a("s_nop 0")
    for kt in range(2):
        for s in range(4): a(mf_qk(0, 0, 0, kt, s))
    m0_reduce(4)
    late(6)
    wait_for('V0')
    a("s_barrier")
    stamp(1, 96)

    def base_phase(sm_adds):
        if not sm_adds:
            return [[('e', 0)], [('e', 1)], [('c', 0)], [], [('e', 2)], [('e', 3)], [('c', 1)], [],
                    [('e', 4)], [('e', 5)], [('c', 2)], [], [('e', 6)], [('e', 7)], [('c', 3)], [], []]
        return [[('e', 0)], [('e', 1)], [('c', 0)], [('a', 0), ('a', 1)], [('e', 2)], [('e', 3)], [('c', 1)], [('a', 2), ('a', 3)],
                [('e', 4)], [('e', 5)], [('c', 2)], [('a', 4), ('a', 5)], [('e', 6)], [('e', 7)], [('c', 3)], [('a', 6), ('a', 7)], []]
    sched = []
    ngap = []
    for k in range(5):
        qp = (k - 1) % 5
        n = 16 + (1 if qp in ones_qt else 0)
        ph = base_phase(k not in ones_qt)[:n]
        sched.append([list(g) for g in ph]); ngap.append(n)
    def put(k, g, it):
        assert g < ngap[k], (k, g)
        sched[k][g].append(it)
    if cfg.nones == 5:
        kpos = [(2, 2), (2, 3), (2, 6), (2, 7), (2, 10), (2, 14), (2, 15), (3, 2)]
        vpos = [(3, 6), (3, 7), (3, 10), (3, 11), (3, 14), (4, 2), (4, 3), (4, 6),
                (4, 10), (4, 11), (4, 14), (0, 2), (0, 6), (0, 7), (0, 10), (0, 14)]
        dpos = [(2, 11), (3, 3), (3, 15), (4, 7), (0, 3), (0, 15), (1, 7), (1, 15)]
        bar_k = 2
    elif cfg.nones == 3:
        kpos = [(2, 2), (2, 3), (2, 6), (2, 10), (2, 14), (2, 15), (3, 2), (3, 6)]
        vpos = [(3, 10), (3, 14), (4, 2), (4, 6), (4, 10), (4, 14), (0, 2), (0, 6),
                (0, 7), (0, 10), (0, 14), (0, 15), (1, 2), (1, 3), (1, 6), (1, 7)]
        dpos = [(2, 7), (2, 11), (2, 16), (3, 16), (0, 3), (0, 11), (1, 11), (1, 15)]
        bar_k = 2
    else:
        raise ValueError
    for idx, (k, g) in enumerate(kpos): put(k, g, ('k', idx))
    for idx, (k, g) in enumerate(vpos): put(k, g, ('v', idx))
    for idx, (k, g) in enumerate(dpos): put(k, g, ('d', idx))
    order = {'k': 0, 'v': 0, 'd': 0, 'x': 0, 'e': 1, 'c': 1, 'a': 1}
    for k in range(5):
        for g in range(ngap[k]): sched[k][g].sort(key=lambda it: order[it[0]])
    lastv = max((k, g) for (k, g) in vpos if k < bar_k)
    assert all(k == 0 or (k == 1 and g < 8) for (k, g) in vpos if k < bar_k)

    def emit_item(it, t, k, u):
        kind, idx = it
        if kind == 'd' and 'nodma' in cfg.dbg: return
        if kind in 'kv' and 'nods' in cfg.dbg: return
        if kind == 'e': a(f"v_exp_f32 {vSr(u % 2, idx)}, {vSr(u % 2, idx)}")
        elif kind == 'c': a(f"v_cvt_pk_bf16_f32 {vPr(u % 2, idx)}, {vSr(u % 2, 2*idx)}, {vSr(u % 2, 2*idx+1)}")
        elif kind == 'a': a(f"v_add_f32 v{V_LS + 2*k + (idx & 1)}, v{V_LS + 2*k + (idx & 1)}, {vSr(u % 2, idx)}")
        elif kind == 'k': a(rd_k((t + 1) % 2, (t + 1) % R, idx // 4, idx % 4))
        elif kind == 'v':
            tt = t + 1 if k >= bar_k else t
            a(rd_v(tt % 2, tt % R, idx // 2, idx % 2))
        elif kind == 'd': a(dma('k' if idx < 4 else 'v', idx % 4))
        elif kind == 'x': a(idx)

    def unit(t, k, scal, drop=(), extra=None, qk=True):
        u = 5 * t + k
        un = u + 1; tn, qn = divmod(un, 5)
        up = u - 1; tp, qp = divmod(up, 5)
        mf = []
        if qk:
            for kt in range(2):
                for s in range(4): mf.append(mf_qk(tn % 2, un % 2, qn, kt, s))
        for dt in range(8): mf.append(mf_pv(tp % 2, up % 2, qp, dt))
        if qp in ones_qt: mf.append(mf_l(up % 2, qp))
        gaps = [[it for it in g if it[0] not in drop] for g in sched[k]]
        if extra:
            for g, its in extra.items(): gaps[g] = list(its) + gaps[g]
        if not qk:
            merged = [[] for _ in range(len(mf))]
            flat = [it for g in gaps for it in g]
            per = -(-len(flat) // len(mf))
            pos = 0
            for g in range(len(mf)):
                merged[g] = flat[pos:pos + per]; pos += per
                merged[g].sort(key=lambda it: order[it[0]])
            assert pos >= len(flat)
            gaps = merged
        for g in range(len(mf)):
            a(mf[g])
            for sc in scal.get(g, []): a(sc)
            prev = None
            for it in gaps[g]:
                if prev and prev[0] == 'e' and it[0] in 'ca': a("s_nop 0")
                emit_item(it, t, k, u); prev = it

    nv_after_k = sum(1 for (k, g) in vpos if k >= bar_k and (k, g) > kpos[-1] and k <= 3)
    assert kpos[-1][0] <= 3
    g_d4 = dpos[4]
    def tile(t, pos):
        for k in range(5):
            scal = {}
            def add(g, s): scal.setdefault(g, []).append(s)
            if (k, 0) == (g_d4[0], 0) or k == g_d4[0]:
                add(max(g_d4[1] - 2, 0), setm0('v', (t + D - 1) % R))
            if k == 1:
                add(7, "s_waitcnt lgkmcnt(0)")
            if k == bar_k - 1 and 'nodma' not in cfg.dbg:
                add(ngap[k] - 1, f"s_waitcnt vmcnt({8 * (D - 2)})")
            if k == bar_k:
                if 'nobar' not in cfg.dbg: add(0, "s_barrier")
            if k == dpos[0][0]:
                add(max(dpos[0][1] - 4, 1), f"s_add_u32 s{S_TOFF}, s{S_TOFF}, 16384")
                add(max(dpos[0][1] - 2, 2), setm0('k', (t + D) % R))
            if k == 3:
                add(ngap[k] - 1, f"s_waitcnt lgkmcnt({nv_after_k})")
            if k == 4 and pos == 2:
                add(ngap[k] - 3, f"s_sub_u32 s{S_CNT}, s{S_CNT}, 1")
                add(ngap[k] - 2, f"s_cmp_eq_u32 s{S_CNT}, 0")
            unit(t, k, scal)

    for idx, (k, g) in enumerate(vpos):
        if k >= bar_k: a(rd_v(0, 0, idx // 2, idx % 2))
    late(7)
    want = []
    for n in range(1, D): want += [('k', n)] + ([('v', n)] if n < D - 1 else [])
    have = [x[0] for x in seq]
    for which, n in want:
        if f"{which.upper()}{n}" not in have: issue_named(which, n)
    got = [x[0] for x in seq if x[0][0] in 'KV' and x[0] not in ('K0', 'V0')]
    assert got == [f"{w.upper()}{n}" for w, n in want], got
    assert toff_tile[0] == D - 1
    a(f"s_mov_b32 s{S_CNT}, {NT // 4}")
    if cfg.stamps:
        a("s_memrealtime s[68:69]"); a("s_memtime s[74:75]")
    a(".p2align 6")
    a("L_loop:")
    for t in range(4):
        tile(t, t)
        if t == 2: a("s_cbranch_scc1 L_tail")
    a("s_branch L_loop")

    a("L_tail:")
    t = 3
    XL = f"v{V_T}"
    for k in range(5):
        scal = {}
        extra = {}
        def add(g, s): scal.setdefault(g, []).append(s)
        if k == 0:
            add(1, "s_waitcnt vmcnt(0)")
        if k == 1:
            add(7, "s_waitcnt lgkmcnt(0)")
            add(9, "s_barrier")
        if k >= 2:
            qd = k - 2
            free = [g for g in range(ngap[k]) if not [it for it in sched[k][g] if it[0] in 'eca']]
            free = (free + [g for g in range(ngap[k]) if len([it for it in sched[k][g] if it[0] in 'eca']) == 1 and sched[k][g][0][0] != 'e' and g not in free])
            free = sorted(free)
            free = [g for g in free if g >= 2][:4]
            for n, dt in enumerate(range(4, 8)):
                extra.setdefault(free[n], []).append(('x', wr_x(qd, dt)))
        unit(t, k, scal, drop=('d', 'k') + (('v',) if k >= bar_k else ()), extra=extra, qk=(k < 4))
    ul = 5 * NT - 1
    a("s_nop 1")
    for dt in range(8):
        a(mf_pv(1, ul % 2, 4, dt))
        if dt < 4: a(wr_x(3, 4 + dt))
    if 4 in ones_qt: a(mf_l(ul % 2, 4))
    if cfg.stamps:
        a("s_memrealtime s[70:71]"); a("s_memtime s[76:77]")
    lq = [V_T + 1 + k for k in range(5)]
    def rowsums_to_regs():
        for qt in range(5):
            if qt in ones_qt: a(f"v_accvgpr_read_b32 v{lq[qt]}, a{A_L + qt*4}")
            else: a(f"v_add_f32 v{lq[qt]}, v{V_LS+2*qt}, v{V_LS+2*qt+1}")
        adds = [qt for qt in range(5) if qt not in ones_qt]
        for swap in ("v_permlane16_swap_b32", "v_permlane32_swap_b32"):
            if not adds: break
            for qt in adds: a(f"v_mov_b32 v{V_T+6+qt}, v{lq[qt]}")
            a("s_nop 1")
            for qt in adds: a(f"{swap} v{lq[qt]}, v{V_T+6+qt}")
            for qt in adds: a(f"v_add_f32 v{lq[qt]}, v{lq[qt]}, v{V_T+6+qt}")
    def publish(first):
        a(f"s_mul_i32 s{S_T+1}, s{S_W}, 1280")
        a(f"s_add_u32 s{S_T+1}, s{S_T+1}, {X_L}")
        a(f"v_lshlrev_b32 {XL}, 2, v{V_LANE}")
        a(f"v_add_u32 {XL}, s{S_T+1}, {XL}")
        rowsums_to_regs()
        a(f"s_mov_b64 s[{S_BAD}:{S_BAD+1}], 0")
        for qt in range(5):
            a(f"ds_write_b32 {XL}, v{lq[qt]} offset:{qt*256}")
        for qt in range(5):
            a(f"v_cmp_nge_f32 vcc, s{S_HI}, v{lq[qt]}")
            a(f"s_or_b64 s[{S_BAD}:{S_BAD+1}], s[{S_BAD}:{S_BAD+1}], vcc")
        if cfg.force_slow and first: a(f"s_mov_b64 s[{S_BAD}:{S_BAD+1}], -1")
        a(f"s_cmp_lg_u64 s[{S_BAD}:{S_BAD+1}], 0")
        a(f"s_cselect_b32 s{S_T}, 1, 0")
        a(f"s_lshl_b32 s{S_T+2}, s{S_W}, 2")
        a(f"s_add_u32 s{S_T+2}, s{S_T+2}, {X_F}")
        a(f"v_mov_b32 v{V_T+12}, s{S_T+2}")
        a(f"v_mov_b32 v{V_T+13}, s{S_T}")
        a(f"ds_write_b32 v{V_T+12}, v{V_T+13}")
    for dt in range(4, 8): pass
    a("s_nop 3")
    a("s_nop 3")
    for dt in range(4, 8): a(wr_x(4, dt))
    publish(True)
    a("L_epi:")
    stamp(3, 88)
    a("s_waitcnt lgkmcnt(0)")
    stamp(3, 90)
    a("s_barrier")
    if cfg.stamps == 3: a("s_memrealtime s[92:93]"); a("s_waitcnt lgkmcnt(0)")
    fl = V_T + 12
    a(f"v_mov_b32 v{V_T+16}, {X_F}")
    a(f"ds_read_b128 v[{fl}:{fl+3}], v{V_T+16}")
    a(f"s_xor_b32 s{S_T+1}, s{S_W}, 1")
    a(f"s_mul_i32 s{S_T+2}, s{S_T+1}, 1280")
    a(f"s_add_u32 s{S_T+2}, s{S_T+2}, {X_L}")
    a(f"v_lshlrev_b32 {XL}, 2, v{V_LANE}")
    a(f"v_add_u32 {XL}, s{S_T+2}, {XL}")
    lo = [V_T + 18 + k for k in range(5)]
    for qt in range(5): a(f"ds_read_b32 v{lo[qt]}, {XL} offset:{qt*256}")
    a(f"v_xor_b32 v{V_T+17}, 20480, v{V_X}" if False else f"s_mul_i32 s{S_T+2}, s{S_J}, 40960")
    a(f"v_add_u32 v{V_T+17}, 20480, v{V_X}")
    a(f"v_subrev_u32 v{V_T+17}, s{S_T+2}, v{V_T+17}")
    a("s_waitcnt lgkmcnt(5)")
    a(f"v_or_b32 v{fl}, v{fl}, v{fl+1}")
    a(f"v_or_b32 v{fl+2}, v{fl+2}, v{fl+3}")
    a(f"v_or_b32 v{fl}, v{fl}, v{fl+2}")
    a("s_nop 0")
    a(f"v_readfirstlane_b32 s{S_T}, v{fl}")
    a("s_nop 3")
    a(f"s_andn2_b32 s{S_T}, s{S_T}, s{S_SLOW}")
    a(f"s_cmp_lg_u32 s{S_T}, 0")
    a("s_cbranch_scc1 L_slow")
    for qt in range(5):
        for dt in range(4):
            b = V_Q + (qt * 4 + dt) * 4
            a(f"ds_read_b128 v[{b}:{b+3}], v{V_T+17} offset:{(qt*4 + dt) * 1024}")
    a("s_waitcnt lgkmcnt(15)")
    PA = [V_S + 2 * k for k in range(5)]
    for qt in range(5): a(f"v_add_f32 v{lq[qt]}, v{lq[qt]}, v{lo[qt]}")
    for qt in range(5): a(f"v_rcp_f32 v{PA[qt]}, v{lq[qt]}")
    pol = (" " + cfg.o_pol) if cfg.o_pol else ""
    stamp(3, 94)
    for qt in range(5):
        a(f"s_waitcnt lgkmcnt({min(15, 16 - 4*qt) if qt < 4 else 0})")
        for dt in range(4):
            o = V_OOWN + (qt * 4 + dt) * 4
            r = V_Q + (qt * 4 + dt) * 4
            for h in range(2):
                a(f"v_pk_add_f32 v[{o+2*h}:{o+2*h+1}], v[{o+2*h}:{o+2*h+1}], v[{r+2*h}:{r+2*h+1}]")
        for dt in range(4):
            o = V_OOWN + (qt * 4 + dt) * 4
            for h in range(2):
                a(f"v_pk_mul_f32 v[{o+2*h}:{o+2*h+1}], v[{o+2*h}:{o+2*h+1}], v[{PA[qt]}:{PA[qt]+1}] op_sel_hi:[1,0]")
        for e in range(2):
            ox = V_OOWN + (qt * 4 + 2 * e) * 4
            oy = ox + 4
            d = V_Q + (qt * 4 + 2 * e) * 4
            a(f"v_cvt_pk_bf16_f32 v{d}, v{ox}, v{ox+1}")
            a(f"v_cvt_pk_bf16_f32 v{d+1}, v{ox+2}, v{ox+3}")
            a(f"v_cvt_pk_bf16_f32 v{d+2}, v{oy}, v{oy+1}")
            a(f"v_cvt_pk_bf16_f32 v{d+3}, v{oy+2}, v{oy+3}")
        a("s_nop 0")
        for e in range(2):
            d = V_Q + (qt * 4 + 2 * e) * 4
            a(f"v_permlane16_swap_b32 v{d}, v{d+2}")
            a(f"v_permlane16_swap_b32 v{d+1}, v{d+3}")
        for e in range(2):
            d = V_Q + (qt * 4 + 2 * e) * 4
            a(f"buffer_store_dwordx4 v[{d}:{d+3}], v{V_OOFF}, s[{SRD_O}:{SRD_O+3}], s{S_QT+qt} offen offset:{e*64}{pol}")
    if cfg.stamps:
        stamp(3, 96)
        a("s_waitcnt vmcnt(0)")
        a("s_memrealtime s[72:73]")
        a("s_waitcnt lgkmcnt(0)")
        a("s_mov_b32 s80, s64"); a("s_and_b32 s81, s65, 0xffff")
        a(f"s_mov_b32 s82, {256 if cfg.stamps == 2 else 0x100000}"); a("s_mov_b32 s83, 0x20000")
        a("s_lshl_b32 s84, s2, 2"); a(f"s_add_u32 s84, s84, s{S_W}"); a("s_lshl_b32 s84, s84, 6")
        a("s_sub_u32 s76, s76, s74")
        stl = (66, 68, 70, 72, 76, 88, 90, 92, 94, 96, 98)
        if cfg.stamps == 2: a("s_not_b32 s100, s66")
        for k, sr in enumerate(stl): a(f"v_mov_b32 v{V_T+k}, s{sr}")
        a(f"v_mov_b32 v{V_T+15}, s84")
        a(f"v_cmp_eq_u32 vcc, 0, v{V_LANE}")
        a("s_and_saveexec_b64 s[86:87], vcc")
        for k in range(len(stl)):
            a(f"buffer_store_dword v{V_T+k}, v{V_T+15}, s[80:83], 0 offen offset:{4*k}")
        a("s_waitcnt vmcnt(0)")
    a("L_done:")
    a("s_endpgm")

    a("L_slow:")
    a("s_waitcnt vmcnt(0) lgkmcnt(0)")
    a(f"s_mov_b32 s{S_SLOW}, 1")
    zero_acc()
    for qt in range(5):
        if qt not in ones_qt:
            for r in range(4): a(f"v_accvgpr_write_b32 a{A_L+qt*4+r}, 0")
    for qt in range(5):
        for r in range(4): a(f"v_mov_b32 v{V_NEGM + qt*4 + r}, 0x7f800000")
    a(f"s_lshl_b32 s{S_TOFF}, s{S_W}, 12")
    a(f"s_mov_b32 s{S_CNT}, {NT}")
    a("L_slow_loop:")
    a("s_waitcnt lgkmcnt(0)")
    a("s_barrier")
    issue_part('k', 0); issue_part('v', 0)
    a(f"s_add_u32 s{S_TOFF}, s{S_TOFF}, 16384")
    a("s_waitcnt vmcnt(0)")
    a("s_barrier")
    for kt in range(2):
        for s in range(4): a(rd_k(0, 0, kt, s))
    a("s_waitcnt lgkmcnt(0)")
    for dt in range(8):
        for kk in range(2): a(rd_v(0, 0, dt, kk))
        if dt == 3: a("s_waitcnt lgkmcnt(0)")
    a("s_waitcnt lgkmcnt(0)")
    T = V_T
    for qt in range(5):
        for kt in range(2):
            for s in range(4): a(mf_qk(0, 0, qt, kt, s, cinit="0"))
        a("s_nop 7"); a("s_nop 1")
        S0 = V_S
        a(f"v_max3_f32 v{T}, v{S0}, v{S0+1}, v{S0+2}")
        a(f"v_max3_f32 v{T}, v{T}, v{S0+3}, v{S0+4}")
        a(f"v_max3_f32 v{T}, v{T}, v{S0+5}, v{S0+6}")
        a(f"v_max_f32 v{T}, v{T}, v{S0+7}")
        a(f"v_mov_b32 v{T+1}, v{T}")
        a("s_nop 1")
        a(f"v_permlane16_swap_b32 v{T}, v{T+1}")
        a("s_nop 1")
        a(f"v_max_f32 v{T}, v{T}, v{T+1}")
        a(f"v_mov_b32 v{T+1}, v{T}")
        a("s_nop 1")
        a(f"v_permlane32_swap_b32 v{T}, v{T+1}")
        a("s_nop 1")
        a(f"v_max_f32 v{T}, v{T}, v{T+1}")
        nm = V_NEGM + qt * 4
        a(f"v_sub_f32 v{T}, 0, v{T}")
        a(f"v_min_f32 v{T}, v{T}, v{nm}")
        a(f"v_sub_f32 v{T+2}, v{T}, v{nm}")
        a(f"v_exp_f32 v{T+2}, v{T+2}")
        for r in range(8): a(f"v_add_f32 v{S0+r}, v{S0+r}, v{T}")
        for r in range(8): a(f"v_exp_f32 v{S0+r}, v{S0+r}")
        for r in range(4): a(f"v_mov_b32 v{nm+r}, v{T}")
        for r in range(4): a(f"v_cvt_pk_bf16_f32 {vPr(0, r)}, v{S0+2*r}, v{S0+2*r+1}")
        def scale_unit(qt, f):
            for dt in range(4):
                o = V_OOWN + (qt * 4 + dt) * 4
                for r in range(4): a(f"v_mul_f32 v{o+r}, v{o+r}, v{f}")
            for k in range(16): a(f"v_accvgpr_read_b32 v{T+4+k}, a{A_OSND + qt*16 + k}")
            a(f"v_accvgpr_read_b32 v{T+3}, a{A_L + qt*4}")
            for k in range(16): a(f"v_mul_f32 v{T+4+k}, v{T+4+k}, v{f}")
            a(f"v_mul_f32 v{T+3}, v{T+3}, v{f}")
            for k in range(16): a(f"v_accvgpr_write_b32 a{A_OSND + qt*16 + k}, v{T+4+k}")
            a(f"v_accvgpr_write_b32 a{A_L + qt*4}, v{T+3}")
        scale_unit(qt, T + 2)
        a("s_nop 1")
        for dt in range(8): a(mf_pv(0, 0, qt, dt))
        a(mf_l(0, qt))
    a(f"s_sub_u32 s{S_CNT}, s{S_CNT}, 1")
    a(f"s_cmp_lg_u32 s{S_CNT}, 0")
    a("s_cbranch_scc1 L_slow_loop")
    a("s_nop 7")
    a("s_waitcnt lgkmcnt(0)")
    a("s_barrier")
    a(f"s_mul_i32 s{S_T+1}, s{S_W}, 1280")
    a(f"s_add_u32 s{S_T+1}, s{S_T+1}, {X_L}")
    a(f"v_lshlrev_b32 v{T}, 2, v{V_LANE}")
    a(f"v_add_u32 v{T}, s{S_T+1}, v{T}")
    for qt in range(5): a(f"ds_write_b32 v{T}, v{V_NEGM + qt*4} offset:{qt*256}")
    a("s_waitcnt lgkmcnt(0)")
    a("s_barrier")
    a(f"s_xor_b32 s{S_T+1}, s{S_W}, 1")
    a(f"s_mul_i32 s{S_T+2}, s{S_T+1}, 1280")
    a(f"s_add_u32 s{S_T+2}, s{S_T+2}, {X_L}")
    a(f"v_lshlrev_b32 v{T}, 2, v{V_LANE}")
    a(f"v_add_u32 v{T}, s{S_T+2}, v{T}")
    for qt in range(5): a(f"ds_read_b32 v{V_S+qt}, v{T} offset:{qt*256}")
    a("s_waitcnt lgkmcnt(0)")
    a("s_barrier")
    for qt in range(5):
        nm = V_NEGM + qt * 4
        a(f"v_min_f32 v{V_S+8}, v{nm}, v{V_S+qt}")
        a(f"v_sub_f32 v{V_S+8}, v{V_S+8}, v{nm}")
        a(f"v_exp_f32 v{V_S+8}, v{V_S+8}")
        a("s_nop 0")
        scale_unit(qt, V_S + 8)
    for qt in range(5):
        if qt not in ones_qt:
            a(f"v_accvgpr_read_b32 v{V_LS+2*qt}, a{A_L + qt*4}")
            a(f"v_mov_b32 v{V_LS+2*qt+1}, 0")
            a(f"v_cmp_gt_u32 vcc, 16, v{V_LANE}")
            a("s_nop 1")
            a(f"v_cndmask_b32 v{V_LS+2*qt}, 0, v{V_LS+2*qt}, vcc")
    a("s_nop 1")
    for qt in range(5):
        for dt in range(4, 8): a(wr_x(qt, dt))
    publish(False)
    a("s_branch L_epi")
    return L

HEADER = """; Kernarg layout for this problem (48 bytes, ptrs only, base s[0:1]):
; @launch grid=(256,1,1) block=(256,1,1) lds={lds}
.amdgcn_target "amdgcn-amd-amdhsa--gfx950"
.text
.globl {name}
.p2align 8
.type {name},@function
{name}:
"""
FOOTER = """
.section .rodata,"a"
.p2align 6
.amdhsa_kernel {name}
  .amdhsa_next_free_vgpr 512
  .amdhsa_next_free_sgpr 102
  .amdhsa_accum_offset 256
  .amdhsa_group_segment_fixed_size 0
  .amdhsa_kernarg_size 48
  .amdhsa_user_sgpr_count 2
  .amdhsa_user_sgpr_kernarg_segment_ptr 1
  .amdhsa_system_sgpr_workgroup_id_x 1
  .amdhsa_float_denorm_mode_32 3
.end_amdhsa_kernel
"""
META = """.amdgpu_metadata
---
amdhsa.version: [1, 2]
amdhsa.kernels:
  - .name: {name}
    .symbol: {name}.kd
    .kernarg_segment_size: 48
    .kernarg_segment_align: 8
    .group_segment_fixed_size: 0
    .private_segment_fixed_size: 0
    .wavefront_size: 64
    .sgpr_count: 102
    .vgpr_count: 512
    .max_flat_workgroup_size: 256
    .args:
      - {{.name: kernargs, .size: 48, .offset: 0, .value_kind: by_value}}
...
.end_amdgpu_metadata
"""

def render(cfg, meta=False):
    body = gen(cfg)
    out = HEADER.format(name=NAME, lds=cfg.lds)
    for l in body:
        out += (l if l.endswith(":") or l.startswith(".") else "    " + l) + "\n"
    out += FOOTER.format(name=NAME)
    if meta: out += META.format(name=NAME)
    return out

if __name__ == "__main__":
    import argparse, subprocess
    ap = argparse.ArgumentParser()
    ap.add_argument("-o", default="k.s")
    ap.add_argument("--kv", default="nt"); ap.add_argument("--q", default=""); ap.add_argument("--op", default="sc0 sc1")
    ap.add_argument("--stamps", type=int, default=0); ap.add_argument("--slow", action="store_true")
    ap.add_argument("--meta", action="store_true")
    ap.add_argument("--dbg", default="")
    ap.add_argument("-D", type=int, default=4)
    ap.add_argument("--nones", type=int, default=5)
    ap.add_argument("--qmode", default="dma"); ap.add_argument("--late", default="0355"); ap.add_argument("--nqf", type=int, default=3)
    args = ap.parse_args()
    cfg = Cfg(); cfg.kv_pol = args.kv; cfg.q_pol = args.q; cfg.o_pol = args.op
    cfg.dbg = tuple(x for x in args.dbg.split(",") if x)
    cfg.stamps = args.stamps; cfg.force_slow = args.slow; cfg.D = args.D; cfg.nones = args.nones; cfg.qmode = args.qmode; cfg.late = args.late; cfg.nq_first = args.nqf
    cfg.lds = 155648 if cfg.qmode == 'dma' else 131072
    open(args.o, "w").write(render(cfg, args.meta))
    if args.meta:
        r = subprocess.run(["clang", "-x", "assembler", "-target", "amdgcn-amd-amdhsa", "-mcpu=gfx950",
                            args.o, "-o", args.o[:-2] + ".co"], capture_output=True, text=True)
        if r.returncode: print(r.stderr[:4000]); sys.exit(1)
```

```python
import sys, math, struct

NAME = "standalone__gqa_softmax__near_ridge_kernel"

class Cfg:
    kv_pol = "nt"
    q_pol = ""
    o_pol = "sc0 sc1"
    stamps = 0
    force_slow = False
    dbg = ()
    D = 4
    nones = 5
    lds = 131072
    tail = True
    sched = "a"
    nq_first = 3
    alt = False
    rot = 0
    qmode = "dma"
    late = "1334"

NT = 32
R = 4

def gen(cfg):
    L = []
    a = L.append
    D = cfg.D
    V_OOWN = 0
    V_Q = 80
    V_NEGM = 160
    V_S = 180
    V_P = 196
    V_AK = 204
    V_AV = 208
    V_DV = 216
    V_T = 218
    V_LS = 242
    V_LANE = 252
    V_QOFF = 253
    V_OOFF = 254
    V_X = 255
    A_OSND = 0
    A_L = 80
    A_KF = 100
    A_VF = 164
    A_ONE = 228
    S_W = 3
    SRD_K, SRD_V, SRD_Q, SRD_O = 12, 16, 20, 24
    S_TOFF = 28
    S_TOFF2 = 29
    S_SEL = 30
    S_NT = 31
    S_M0K = 32
    S_M0V = 36
    S_QT = 40
    S_CNT = 45
    S_J = 46
    S_I = 47
    S_C = 48
    S_HI = 50
    S_SLOW = 51
    S_BAD = 52
    S_T = 54
    S_J128 = 60
    S_J8K = 61
    X_L = 40960
    X_F = 46080
    ones_qt = set(range(cfg.nones))

    def vq(qt, s): b = V_Q + (qt * 4 + s) * 4; return f"v[{b}:{b+3}]"
    def vnegm(qt): b = V_NEGM + qt * 4; return f"v[{b}:{b+3}]"
    def vS(buf, kt): b = V_S + buf * 8 + kt * 4; return f"v[{b}:{b+3}]"
    def vSr(buf, r): return f"v{V_S + buf * 8 + r}"
    def vP(buf): b = V_P + buf * 4; return f"v[{b}:{b+3}]"
    def vPr(buf, r): return f"v{V_P + buf * 4 + r}"
    def aKF(buf, kt, s): b = A_KF + buf * 32 + (kt * 4 + s) * 4; return f"a[{b}:{b+3}]"
    def aVF(buf, dt): b = A_VF + buf * 32 + dt * 4; return f"a[{b}:{b+3}]"
    def aVFh(buf, dt, kk): b = A_VF + buf * 32 + dt * 4 + kk * 2; return f"a[{b}:{b+1}]"
    def oacc(dt, qt):
        if dt < 4: b = V_OOWN + (qt * 4 + dt) * 4; return f"v[{b}:{b+3}]"
        b = A_OSND + (qt * 4 + dt - 4) * 4; return f"a[{b}:{b+3}]"
    def aL(qt): b = A_L + qt * 4; return f"a[{b}:{b+3}]"
    aONE = f"a[{A_ONE}:{A_ONE+3}]"
    MF = "v_mfma_f32_16x16x32_bf16"

    def mf_qk(kbuf, sbuf, qt, kt, s, cinit=None):
        c = vS(sbuf, kt) if s else (vnegm(qt) if cinit is None else cinit)
        return f"{MF} {vS(sbuf, kt)}, {aKF(kbuf, kt, s)}, {vq(qt, s)}, {c}"
    def mf_pv(vbuf, pbuf, qt, dt):
        return f"{MF} {oacc(dt, qt)}, {aVF(vbuf, dt)}, {vP(pbuf)}, {oacc(dt, qt)}"
    def mf_l(pbuf, qt):
        return f"{MF} {aL(qt)}, {aONE}, {vP(pbuf)}, {aL(qt)}"
    def rd_k(buf, slot, kt, s):
        return f"ds_read_b128 {aKF(buf, kt, s)}, v{V_AK + s} offset:{slot * 16384 + kt * 4096}"
    def rd_v(buf, slot, dt, kk):
        return f"ds_read_b64_tr_b16 {aVFh(buf, dt, kk)}, v{V_AV + dt} offset:{slot * 16384 + kk * 4096}"
    def dma(which, p):
        srd = SRD_K if which == 'k' else SRD_V
        pol = (" " + cfg.kv_pol) if cfg.kv_pol else ""
        so = S_TOFF2 if (cfg.alt and which == 'v') else S_TOFF
        return f"buffer_load_dwordx4 v{V_DV + (p & 1)}, s[{srd}:{srd+3}], s{so} offen offset:{p * 1024}{pol} lds"
    def setm0(which, slot):
        return f"s_mov_b32 m0, s{(S_M0K if which == 'k' else S_M0V) + slot}"
    def wr_x(qt, dt):
        return f"ds_write_b128 v{V_X}, {oacc(dt, qt)} offset:{(qt*4 + dt - 4) * 1024}"
    def stamp(kind, pair):
        if cfg.stamps == 5: return
        if cfg.stamps == kind or (kind == 1 and cfg.stamps == 2): a(f"s_memrealtime s[{pair}:{pair+1}]")

    a("s_cmp_ge_u32 s2, 256")
    a("s_cbranch_scc1 L_done")
    a("s_load_dwordx4 s[4:7], s[0:1], 0")
    a("s_load_dwordx4 s[8:11], s[0:1], 16")
    if cfg.stamps:
        a(f"s_load_dwordx2 s[64:65], s[0:1], {32 if cfg.stamps == 2 else 40}")
        a("s_memrealtime s[66:67]")
    a(f"v_lshrrev_b32 v{V_T}, 6, v0")
    a(f"v_and_b32 v{V_LANE}, 63, v0")
    a(f"v_readfirstlane_b32 s{S_W}, v{V_T}")
    t15, tg, t0, t1, t2, t3 = [f"v{V_T + k}" for k in range(1, 7)]
    a(f"v_and_b32 {t15}, 15, v{V_LANE}")
    a(f"v_lshrrev_b32 {tg}, 4, v{V_LANE}")
    a(f"s_lshr_b32 s{S_T}, s2, 4")
    a(f"s_lshl_b32 s{S_T}, s{S_T}, 3")
    a(f"s_and_b32 s{S_T+1}, s2, 7")
    a(f"s_add_u32 s{S_T}, s{S_T}, s{S_T+1}")
    a(f"s_lshr_b32 s{S_T+1}, s2, 3")
    a(f"s_and_b32 s{S_T+1}, s{S_T+1}, 1")
    a(f"s_mov_b32 s{S_SEL}, s{S_T+1}")
    a(f"s_lshl_b32 s{S_T+2}, s{S_T}, 1")
    a(f"s_add_u32 s{S_T+1}, s{S_T+2}, s{S_T+1}")
    a(f"s_lshr_b32 s{S_I}, s{S_W}, 1")
    a(f"s_and_b32 s{S_J}, s{S_W}, 1")
    a(f"s_mul_i32 s{S_T+1}, s{S_T+1}, 40960")
    a(f"s_mul_i32 s{S_T+2}, s{S_I}, 20480")
    a(f"s_add_u32 s{S_T+1}, s{S_T+1}, s{S_T+2}")
    a(f"s_lshl_b32 s{S_T}, s{S_T}, 19")
    a(f"v_lshlrev_b32 {t0}, 1, {tg}")
    a(f"v_xor_b32 {t0}, {t0}, {t15}")
    a(f"v_lshlrev_b32 {t0}, 4, {t0}")
    a(f"v_lshl_add_u32 v{V_DV}, {tg}, 8, {t0}")
    a(f"v_xor_b32 v{V_DV+1}, 128, v{V_DV}")
    a(f"v_lshlrev_b32 {t0}, 8, {t15}")
    a(f"v_lshl_add_u32 v{V_QOFF}, {tg}, 4, {t0}")
    for q in range(5): a(f"s_mov_b32 s{S_QT+q}, {q * 4096}")
    a(f"s_lshl_b32 s{S_TOFF}, s{S_W}, 12")
    for sl in range(R):
        a(f"s_add_u32 s{S_M0K+sl}, s{S_TOFF}, {sl * 16384}")
        a(f"s_add_u32 s{S_M0V+sl}, s{S_TOFF}, {65536 + sl * 16384}")
    if cfg.rot:
        a(f"s_lshr_b32 s{S_T+3}, s{S_T}, 19")
        a(f"s_mul_i32 s{S_T+3}, s{S_T+3}, {cfg.rot}")
        a(f"s_and_b32 s{S_T+3}, s{S_T+3}, 31")
        a(f"s_lshl_b32 s{S_T+3}, s{S_T+3}, 14")
        a(f"s_add_u32 s{S_TOFF}, s{S_TOFF}, s{S_T+3}")
        a(f"s_mov_b32 s{S_NT}, 0")
    a(f"s_mov_b32 s{S_TOFF2}, s{S_TOFF}")
    a(setm0('k', 0))
    a(f"s_mov_b32 s{SRD_Q+2}, 20480"); a(f"s_mov_b32 s{SRD_Q+3}, 0x20000")
    a(f"s_mov_b32 s{SRD_K+2}, 524288"); a(f"s_mov_b32 s{SRD_K+3}, 0x20000")
    a(f"s_mov_b32 s{SRD_V+2}, 524288"); a(f"s_mov_b32 s{SRD_V+3}, 0x20000")
    a(f"s_mov_b32 s{SRD_O+2}, 20480"); a(f"s_mov_b32 s{SRD_O+3}, 0x20000")
    a("s_waitcnt lgkmcnt(0)")
    stamp(1, 88)
    a(f"s_add_u32 s{SRD_K}, s6, s{S_T}"); a(f"s_addc_u32 s{SRD_K+1}, s7, 0")
    a(f"s_and_b32 s{SRD_K+1}, s{SRD_K+1}, 0xffff")
    for p in range(4): a(dma('k', p))
    a(f"s_add_u32 s{SRD_Q}, s4, s{S_T+1}"); a(f"s_addc_u32 s{SRD_Q+1}, s5, 0")
    a(f"s_and_b32 s{SRD_Q+1}, s{SRD_Q+1}, 0xffff")
    pol = (" " + cfg.q_pol) if cfg.q_pol else ""
    def load_q(qt):
        for s in range(4):
            a(f"buffer_load_dwordx4 {vq(qt, s)}, v{V_QOFF}, s[{SRD_Q}:{SRD_Q+3}], s{S_QT+qt} offen offset:{s*64}{pol}")
    QB = 114688
    S_QM = 62
    if cfg.qmode == "dma":
        a(f"s_lshl_b32 s{S_T+3}, s{S_J}, 11")
        a(f"s_mul_i32 s{S_QM}, s{S_I}, 20480")
        a(f"s_add_u32 s{S_QM}, s{S_QM}, s{S_T+3}")
        a(f"s_add_u32 s{S_QM}, s{S_QM}, {QB}")
        qpol = (" " + cfg.q_pol) if cfg.q_pol else ""
        for qt in range(5):
            a(f"s_add_u32 m0, s{S_QM}, {qt * 4096}")
            a(f"s_add_u32 s{S_T+4}, s{S_T+3}, {qt * 4096}")
            for p in range(2):
                a(f"buffer_load_dwordx4 v{V_DV + p}, s[{SRD_Q}:{SRD_Q+3}], s{S_T+4} offen offset:{p * 1024}{qpol} lds")
    else:
        for qt in range(cfg.nq_first): load_q(qt)
    a(f"s_add_u32 s{SRD_V}, s8, s{S_T}"); a(f"s_addc_u32 s{SRD_V+1}, s9, 0")
    a(f"s_and_b32 s{SRD_V+1}, s{SRD_V+1}, 0xffff")
    a(f"s_add_u32 s{SRD_O}, s10, s{S_T+1}"); a(f"s_addc_u32 s{SRD_O+1}, s11, 0")
    a(f"s_and_b32 s{SRD_O+1}, s{SRD_O+1}, 0xffff")
    def issue_part(which, slot):
        a(setm0(which, slot)); a("s_nop 0")
        for p in range(4): a(dma(which, p))
    a(f"s_lshl_b32 s{S_J8K}, s{S_J}, 13")
    a(f"v_and_b32 {t0}, 7, {t15}")
    a(f"v_lshlrev_b32 {t0}, 1, {t0}")
    a(f"v_xor_b32 {t0}, {t0}, {tg}")
    a(f"v_lshlrev_b32 {t0}, 4, {t0}")
    a(f"v_lshl_add_u32 {t0}, {t15}, 8, {t0}")
    VM = V_T + 8
    a(f"v_mov_b32 v{VM}, {t0}")
    for s in range(1, 4): a(f"v_xor_b32 v{VM+s}, {s*64}, {t0}")
    for s in range(4): a(f"v_add_u32 v{V_AK+s}, s{S_J8K}, v{VM+s}")
    a(f"v_lshrrev_b32 {t0}, 2, {t15}")
    a(f"v_lshl_add_u32 {t0}, {tg}, 2, {t0}")
    a(f"v_and_b32 {t1}, 7, {t0}")
    a(f"v_lshlrev_b32 {t1}, 1, {t1}")
    a(f"v_bfe_u32 {t2}, {t15}, 1, 1")
    a(f"v_xor_b32 {t1}, {t1}, {t2}")
    a(f"v_lshlrev_b32 {t1}, 4, {t1}")
    a(f"v_lshl_add_u32 {t1}, {t0}, 8, {t1}")
    a(f"v_and_b32 {t2}, 1, {t15}")
    a(f"v_lshl_add_u32 {t1}, {t2}, 3, {t1}")
    a(f"s_lshl_b32 s{S_J128}, s{S_J}, 7")
    a(f"s_add_u32 s{S_T}, s{S_J8K}, 65536")
    a(f"v_add_u32 {t1}, s{S_T}, {t1}")
    a(f"v_xor_b32 v{V_AV}, s{S_J128}, {t1}")
    for dt in range(1, 8): a(f"v_xor_b32 v{V_AV+dt}, {dt*32}, v{V_AV}")
    a(f"v_and_b32 {t0}, 1, {tg}")
    a(f"v_lshlrev_b32 {t0}, 5, {t0}")
    a(f"v_lshrrev_b32 {t1}, 1, {tg}")
    a(f"v_lshl_add_u32 {t0}, {t1}, 4, {t0}")
    a(f"v_lshl_add_u32 {t0}, {t15}, 8, {t0}")
    a(f"v_add_u32 v{V_OOFF}, s{S_J128}, {t0}")
    a(f"s_mul_i32 s{S_T}, s{S_J}, 20480")
    a(f"s_lshl_b32 s{S_T+1}, s{S_I}, 16")
    a(f"s_add_u32 s{S_T}, s{S_T}, s{S_T+1}")
    a(f"v_lshlrev_b32 {t0}, 4, v{V_LANE}")
    a(f"v_add_u32 v{V_X}, s{S_T}, {t0}")
    V_XL, V_XLP, V_XP = V_T + 22, V_T + 23, V_LS
    a(f"s_mul_i32 s{S_T+1}, s{S_J}, 40960")
    a(f"v_add_u32 v{V_XP}, 20480, v{V_X}")
    a(f"v_subrev_u32 v{V_XP}, s{S_T+1}, v{V_XP}")
    a(f"s_mul_i32 s{S_T+1}, s{S_W}, 1280")
    a(f"s_add_u32 s{S_T+1}, s{S_T+1}, {X_L}")
    a(f"v_lshlrev_b32 {t0}, 2, v{V_LANE}")
    a(f"v_add_u32 v{V_XL}, s{S_T+1}, {t0}")
    a(f"s_xor_b32 s{S_T+1}, s{S_W}, 1")
    a(f"s_mul_i32 s{S_T+1}, s{S_T+1}, 1280")
    a(f"s_add_u32 s{S_T+1}, s{S_T+1}, {X_L}")
    a(f"v_add_u32 v{V_XLP}, s{S_T+1}, {t0}")
    cval = math.log2(math.e) / math.sqrt(128.0)
    cbits = struct.unpack("<I", struct.pack("<f", cval))[0]
    a(f"s_mov_b32 s{S_C}, {cbits:#x}"); a(f"s_mov_b32 s{S_C+1}, {cbits:#x}")
    a(f"s_mov_b32 s{S_HI}, 0x4e800000")
    a(f"s_mov_b32 s{S_SLOW}, 0")
    def zero_acc():
        for r in range(0, 80, 2): a(f"v_mov_b64 v[{V_OOWN+r}:{V_OOWN+r+1}], 0")
        for r in range(80): a(f"v_accvgpr_write_b32 a{A_OSND+r}, 0")
        for qt in range(5):
            if qt in ones_qt:
                for r in range(4): a(f"v_accvgpr_write_b32 a{A_L+qt*4+r}, 0")
            else:
                assert qt >= 3
                a(f"v_mov_b64 v[{V_LS+2*qt}:{V_LS+2*qt+1}], 0")
    zero_acc()
    for r in range(32): a(f"v_accvgpr_write_b32 a{A_VF+32+r}, 0")
    a(f"v_mov_b32 {t0}, 0x3f803f80")
    for r in range(4): a(f"v_accvgpr_write_b32 a{A_ONE+r}, {t0}")
    for r in range(0, 4, 2): a(f"v_mov_b64 v[{V_P+4+r}:{V_P+4+r+1}], 0")
    stamp(1, 90)
    parts = [('v', 0), ('k', 1), ('v', 1), ('k', 2)]
    late_pt = [int(c) for c in cfg.late]
    seq = []
    seq.append(('K0', 4))
    if cfg.qmode == "dma": seq += [(f'Q{q}', 2) for q in range(5)]
    else: seq += [(f'Q{q}', 4) for q in range(cfg.nq_first)]
    toff_tile = [0, 0]
    def swap_streams():
        a(f"s_cmp_lg_u32 s{S_SEL}, 0")
        pairs = [(SRD_K, SRD_V), (SRD_K + 1, SRD_V + 1)] + [(S_M0K + n, S_M0V + n) for n in range(R)]
        for x, y in pairs:
            a(f"s_cselect_b32 s{S_T+5}, s{y}, s{x}")
            a(f"s_cselect_b32 s{y}, s{x}, s{y}")
            a(f"s_mov_b32 s{x}, s{S_T+5}")
    def issue_named(which, n):
        c = 1 if (cfg.alt and which == 'v') else 0
        reg = S_TOFF2 if c else S_TOFF
        while toff_tile[c] < n:
            a(f"s_add_u32 s{reg}, s{reg}, 16384"); toff_tile[c] += 1
            if cfg.rot:
                a(f"s_and_b32 s{reg}, s{reg}, 0x7ffff"); a(f"s_add_u32 s{S_NT}, s{S_NT}, 1")
        issue_part(which, n % R)
        seq.append((f"{which.upper()}{n}", 4))
        if cfg.alt and (which, n) == ('v', 0): swap_streams()
    def wait_for(name, extra=""):
        i = [x[0] for x in seq].index(name)
        a(f"s_waitcnt vmcnt({sum(c for _, c in seq[i+1:])}){extra}")
    def late(point):
        for n, (which, tile_) in enumerate(parts):
            if late_pt[n] == point and n < nlate: issue_named(which, tile_)
    nlate = 3 if D == 3 else 4
    if cfg.qmode != "dma":
        for qt in range(cfg.nq_first, 5):
            load_q(qt); seq.append((f'Q{qt}', 4))
    late(0)
    def q_reads(qt):
        for s in range(4): a(f"ds_read_b128 {vq(qt, s)}, v{VQA+s} offset:{qt * 4096}")
    VQA = V_T + 22 - 22 + 0
    if cfg.qmode == "dma":
        VQA = V_S
        a(f"s_mul_i32 s{S_T+3}, s{S_I}, 20480")
        a(f"s_add_u32 s{S_T+3}, s{S_T+3}, {QB}")
        for s in range(4): a(f"v_add_u32 v{VQA+s}, s{S_T+3}, v{VM+s}")
        wait_for('Q0')
        a("s_barrier")
        q_reads(0)
    else:
        wait_for('K0')
        a("s_barrier")
    for s in range(4): a(f"ds_read_b128 {aKF(1, 0, s)}, v{VM+s}")
    for kt in range(2):
        for s in range(4): a(rd_k(0, 0, kt, s))
    def prescale(qt):
        for r in range(16):
            q = V_Q + qt * 16 + r
            tb = V_T + 12 + 2 * (r % 4)
            a(f"v_lshlrev_b32 v{tb}, 16, v{q}")
            a(f"v_and_b32 v{tb+1}, 0xffff0000, v{q}")
            a(f"v_pk_mul_f32 v[{tb}:{tb+1}], v[{tb}:{tb+1}], s[{S_C}:{S_C+1}]")
            a(f"v_cvt_pk_bf16_f32 v{q}, v{tb}, v{tb+1}")
    def tq(qt): return V_S + 8 + 4 * (qt % 2)
    def m0_mfma(qt):
        b = tq(qt)
        for s in range(4):
            c = "0" if s == 0 else f"v[{b}:{b+3}]"
            a(f"{MF} v[{b}:{b+3}], {aKF(1, 0, s)}, {vq(qt, s)}, {c}")
    def m0_reduce(qt):
        b = tq(qt); mx = f"v{V_T+20}"; my = f"v{V_T+21}"
        a(f"v_max3_f32 {mx}, v{b}, v{b+1}, v{b+2}")
        a(f"v_max_f32 {mx}, {mx}, v{b+3}")
        a(f"v_mov_b32 {my}, {mx}")
        a("s_nop 1")
        a(f"v_permlane16_swap_b32 {mx}, {my}")
        a(f"v_max_f32 {mx}, {mx}, {my}")
        a(f"v_mov_b32 {my}, {mx}")
        a("s_nop 1")
        a(f"v_permlane32_swap_b32 {mx}, {my}")
        a(f"v_max_f32 {mx}, {mx}, {my}")
        for r in range(4): a(f"v_sub_f32 v{V_NEGM + qt*4 + r}, 0, {mx}")
    if cfg.qmode == "dma":
        stamp(1, 92); stamp(4, 88)
        late(1)
        for qt in range(5):
            if qt < 4:
                wait_for(f'Q{qt+1}')
                a("s_barrier")
                q_reads(qt + 1)
                stamp(4, 90 + 2 * qt)
                late(qt + 2)
            if qt == 0: a("s_waitcnt lgkmcnt(12)")
            elif qt < 4: a("s_waitcnt lgkmcnt(4)")
            else: a("s_waitcnt lgkmcnt(0)")
            prescale(qt)
            m0_mfma(qt)
            if qt > 0: m0_reduce(qt - 1)
            if qt == 0: stamp(4, 98)
    else:
        for qt in range(5):
            wait_for(f'Q{qt}')
            if qt == 0: stamp(1, 92)
            stamp(4, 88 + 2 * qt)
            late(qt + 1)
            if qt == 0: a("s_waitcnt lgkmcnt(0)")
            prescale(qt)
            m0_mfma(qt)
            if qt > 0: m0_reduce(qt - 1)
            if qt == 0: stamp(4, 98)
    stamp(1, 94)
    a("s_nop 0")
    for kt in range(2):
        for s in range(4): a(mf_qk(0, 0, 0, kt, s))
    m0_reduce(4)
    late(6)
    wait_for('V0')
    a("s_barrier")
    stamp(1, 96)

    def base_phase(sm_adds):
        if not sm_adds:
            return [[('e', 0)], [('e', 1)], [('c', 0)], [], [('e', 2)], [('e', 3)], [('c', 1)], [],
                    [('e', 4)], [('e', 5)], [('c', 2)], [], [('e', 6)], [('e', 7)], [('c', 3)], [], []]
        return [[('e', 0)], [('e', 1)], [('c', 0)], [('a', 0), ('a', 1)], [('e', 2)], [('e', 3)], [('c', 1)], [('a', 2), ('a', 3)],
                [('e', 4)], [('e', 5)], [('c', 2)], [('a', 4), ('a', 5)], [('e', 6)], [('e', 7)], [('c', 3)], [('a', 6), ('a', 7)], []]
    sched = []
    ngap = []
    for k in range(5):
        qp = (k - 1) % 5
        n = 16 + (1 if qp in ones_qt else 0)
        ph = base_phase(k not in ones_qt)[:n]
        sched.append([list(g) for g in ph]); ngap.append(n)
    def put(k, g, it):
        assert g < ngap[k], (k, g)
        sched[k][g].append(it)
    if cfg.nones == 5 and cfg.sched == "a":
        kpos = [(2, 2), (2, 3), (2, 6), (2, 7), (2, 10), (2, 14), (2, 15), (3, 2)]
        vpos = [(3, 6), (3, 7), (3, 10), (3, 11), (3, 14), (4, 2), (4, 3), (4, 6),
                (4, 10), (4, 11), (4, 14), (0, 2), (0, 6), (0, 7), (0, 10), (0, 14)]
        dpos = [(2, 11), (3, 3), (3, 15), (4, 7), (0, 3), (0, 15), (1, 7), (1, 15)]
        bar_k = 2
    elif cfg.nones == 5 and cfg.sched == "b":
        kpos = [(1, 2), (1, 6), (1, 10), (1, 14), (2, 2), (2, 6), (2, 10), (2, 14)]
        vpos = [(2, 3), (2, 15), (3, 2), (3, 6), (3, 10), (3, 14), (3, 15), (4, 2),
                (4, 6), (4, 10), (4, 14), (0, 2), (0, 6), (0, 7), (0, 10), (0, 14)]
        dpos = [(1, 7), (1, 16), (2, 11), (3, 3), (3, 16), (4, 7), (4, 16), (0, 11)]
        bar_k = 1
    elif cfg.nones == 3:
        kpos = [(1, 2), (1, 3), (1, 6), (1, 10), (1, 14), (2, 2), (2, 6), (2, 10)]
        vpos = [(2, 3), (2, 14), (2, 15), (3, 2), (3, 6), (3, 10), (3, 14), (4, 2),
                (4, 6), (4, 10), (4, 14), (0, 2), (0, 6), (0, 7), (0, 10), (0, 14)]
        dpos = [(1, 7), (1, 15), (2, 7), (2, 16), (3, 16), (0, 3), (0, 11), (0, 15)]
        bar_k = 1
    elif cfg.nones == 2:
        kpos = [(1, 2), (1, 3), (1, 6), (1, 10), (1, 14), (2, 2), (2, 6), (2, 10)]
        vpos = [(2, 14), (3, 2), (3, 6), (3, 10), (3, 14), (4, 2), (4, 6), (4, 10),
                (4, 14), (0, 2), (0, 6), (0, 7), (0, 10), (0, 14), (0, 15), (1, -1)]
        raise ValueError("no room")
    else:
        raise ValueError
    assert D == 3 or bar_k == 2
    def pkey(p): return ((p[0] - bar_k) % 5, p[1])
    for lst in (kpos, vpos, dpos): assert sorted(lst, key=pkey) == lst, lst
    for idx, (k, g) in enumerate(kpos): put(k, g, ('k', idx))
    for idx, (k, g) in enumerate(vpos): put(k, g, ('v', idx))
    for idx, (k, g) in enumerate(dpos): put(k, g, ('d', idx))
    order = {'k': 0, 'v': 0, 'd': 0, 'x': 0, 'e': 1, 'c': 1, 'a': 1}
    for k in range(5):
        for g in range(ngap[k]): sched[k][g].sort(key=lambda it: order[it[0]])
        for g in range(ngap[k]):
            cost = sum({'e': 8, 'd': 8}.get(it[0], 4) for it in sched[k][g])
            assert cost <= 8, (k, g, sched[k][g])
    assert all(k == 0 or (k == 1 and g < 7) for (k, g) in vpos if k < bar_k)
    assert all(k >= bar_k for (k, g) in kpos) and kpos[-1][0] <= 3
    ds_all = sorted(kpos + vpos, key=pkey)
    def ds_between(after, upto):
        n = 0
        span = lambda p: (pkey(p)[0] * 32 + p[1] - (pkey(after)[0] * 32 + after[1])) % 160
        for p in ds_all:
            if 0 < span(p) < span(upto): n += 1
        return n
    n_w1 = ds_between(kpos[-1], (3, ngap[3] - 1)) + sum(1 for p in ds_all if p == kpos[-1]) - 1
    n_w2 = ds_between(vpos[-1], (1, 7))

    def emit_item(it, t, k, u):
        kind, idx = it
        if kind == 'd' and 'nodma' in cfg.dbg: return
        if kind in 'kv' and 'nods' in cfg.dbg: return
        if kind == 'e' and 'noexp' in cfg.dbg: return
        if kind == 'c' and 'nocvt' in cfg.dbg: return
        if kind == 'e': a(f"v_exp_f32 {vSr(u % 2, idx)}, {vSr(u % 2, idx)}")
        elif kind == 'c': a(f"v_cvt_pk_bf16_f32 {vPr(u % 2, idx)}, {vSr(u % 2, 2*idx)}, {vSr(u % 2, 2*idx+1)}")
        elif kind == 'a': a(f"v_add_f32 v{V_LS + 2*k + (idx & 1)}, v{V_LS + 2*k + (idx & 1)}, {vSr(u % 2, idx)}")
        elif kind == 'k': a(rd_k((t + 1) % 2, (t + 1) % R, idx // 4, idx % 4))
        elif kind == 'v':
            tt = t + 1 if k >= bar_k else t
            a(rd_v(tt % 2, tt % R, idx // 2, idx % 2))
        elif kind == 'd': a(dma('k' if idx < 4 else 'v', idx % 4))
        elif kind == 'x': a(idx)

    def unit(t, k, scal, drop=(), extra=None, qk=True):
        u = 5 * t + k
        un = u + 1; tn, qn = divmod(un, 5)
        up = u - 1; tp, qp = divmod(up, 5)
        mf = []
        if qk:
            for kt in range(2):
                for s in range(4): mf.append(mf_qk(tn % 2, un % 2, qn, kt, s))
        for dt in range(8): mf.append(mf_pv(tp % 2, up % 2, qp, dt))
        if qp in ones_qt: mf.append(mf_l(up % 2, qp))
        gaps = [[it for it in g if it[0] not in drop] for g in sched[k]]
        if extra:
            for g, its in extra.items(): gaps[g] = list(its) + gaps[g]
        if not qk:
            merged = [[] for _ in range(len(mf))]
            flat = [it for g in gaps for it in g]
            per = -(-len(flat) // len(mf))
            pos = 0
            for g in range(len(mf)):
                merged[g] = flat[pos:pos + per]; pos += per
                merged[g].sort(key=lambda it: order[it[0]])
            assert pos >= len(flat)
            gaps = merged
        for g in range(len(mf)):
            a(mf[g])
            for sc in scal.get(g, []): a(sc)
            if 'pad1' in cfg.dbg and g == 5: a("s_nop 7"); a("s_nop 3")
            if 'pad2' in cfg.dbg and g in (5, 12): a("s_nop 7"); a("s_nop 3")
            prev = None
            for it in gaps[g]:
                if prev and prev[0] == 'e' and it[0] in 'ca': a("s_nop 0")
                emit_item(it, t, k, u); prev = it

    def tile(t, pos):
        for k in range(5):
            scal = {}
            def add(g, s): scal.setdefault(g, []).append(s)
            def before(p, dist, s):
                pk, pg = p
                if pg - dist >= 0:
                    if k == pk: add(pg - dist, s)
                elif k == (pk - 1) % 5: add(ngap[k] + pg - dist, s)
            tk = t + D
            tv = tk if dpos[4][0] >= bar_k else tk - 1
            before(dpos[0], 3 if dpos[0][1] >= 4 else 2, f"s_add_u32 s{S_TOFF}, s{S_TOFF}, 16384")
            if cfg.rot:
                assert not cfg.alt and dpos[0][1] >= 9
                before(dpos[0], 9, f"s_add_u32 s{S_NT}, s{S_NT}, 1")
                before(dpos[0], 8, f"s_cmp_ge_u32 s{S_NT}, {NT}")
                before(dpos[0], 7, f"s_cselect_b32 s{SRD_K+2}, 0, s{SRD_K+2}")
                before(dpos[0], 1, f"s_and_b32 s{S_TOFF}, s{S_TOFF}, 0x7ffff")
                before(dpos[4], 3, f"s_mov_b32 s{SRD_V+2}, s{SRD_K+2}") if dpos[4][0] >= bar_k else None
                if dpos[4][0] < bar_k:
                    before(dpos[4], 1, f"s_mov_b32 s{SRD_V+2}, s{SRD_K+2}")
            if cfg.alt:
                tv -= 1
                before(dpos[4], 1, f"s_add_u32 s{S_TOFF2}, s{S_TOFF2}, 16384")
            before(dpos[0], 2 if dpos[0][1] >= 4 else 1, setm0('k', tk % R))
            before(dpos[4], 2, setm0('v', tv % R))
            if k == 1: add(7, f"s_waitcnt lgkmcnt({n_w2})")
            if k == (bar_k - 1) % 5 and 'nodma' not in cfg.dbg:
                wp = (k, ngap[k] - 1)
                issued = sum(1 for p in dpos if pkey(p) < pkey(wp))
                add(ngap[k] - 1, f"s_waitcnt vmcnt({8 * (D - 3) + issued - (8 if cfg.alt else 0)})")
            if k == bar_k and 'nobar' not in cfg.dbg: add(0, "s_barrier")
            if k == 3: add(ngap[k] - 1, f"s_waitcnt lgkmcnt({n_w1})")
            if k == 4 and pos == 2:
                add(ngap[k] - 3, f"s_sub_u32 s{S_CNT}, s{S_CNT}, 1")
                add(ngap[k] - 2, f"s_cmp_eq_u32 s{S_CNT}, 0")
            unit(t, k, scal)
    assert dpos[0][0] >= bar_k and dpos[0][1] >= 2 and dpos[3][0] >= bar_k
    assert dpos[4][1] >= 2

    for idx, (k, g) in enumerate(vpos):
        if k >= bar_k: a(rd_v(0, 0, idx // 2, idx % 2))
    late(7)
    want = []
    if cfg.alt:
        assert D == 4 and bar_k == 2
        want = [('k', 1), ('v', 1), ('k', 2), ('k', 3)]
    else:
        for n in range(1, D): want += [('k', n)] + ([('v', n)] if n < D - 1 else [])
    have = [x[0] for x in seq]
    for which, n in want:
        if f"{which.upper()}{n}" not in have: issue_named(which, n)
    got = [x[0] for x in seq if x[0][0] in 'KV' and x[0] not in ('K0', 'V0')]
    assert got == [f"{w.upper()}{n}" for w, n in want], got
    assert toff_tile[0] == D - 1
    if cfg.alt: assert toff_tile[1] == 1
    early_v = [idx - 4 for idx in range(4, 8) if dpos[idx][0] >= bar_k]
    if early_v:
        a(setm0('v', (D - 1) % R)); a("s_nop 0")
        for p in early_v: a(dma('v', p))
    a(f"s_mov_b32 s{S_CNT}, {NT // 4}")
    if cfg.stamps:
        a("s_memrealtime s[68:69]"); a("s_memtime s[74:75]")
    a(".p2align 6")
    a("L_loop:")
    for t in range(4):
        tile(t, t)
        if t == 2: a("s_cbranch_scc1 L_tail")
    a("s_branch L_loop")

    a("L_tail:")
    t = 3
    class DS:
        def __init__(self): self.q = []
        def issue(self, name, text): a(text); self.q.append(name)
        def note(self, name): self.q.append(name)
        def wait(self, names):
            last = max(i for i, n in enumerate(self.q) if n in names)
            a(f"s_waitcnt lgkmcnt({min(15, len(self.q) - 1 - last)})")
    def wr_l(qt): return f"ds_write_b32 v{V_XL}, a{A_L + qt*4} offset:{qt*256}"
    for k in range(5):
        scal = {}
        extra = {}
        def add(g, s): scal.setdefault(g, []).append(s)
        if k == 0:
            add(1, "s_waitcnt vmcnt(0)")
        if k == 1:
            add(7, "s_waitcnt lgkmcnt(0)")
            add(9, "s_barrier")
        if k >= 2:
            qd = k - 2
            assert qd in ones_qt
            free = [g for g in range(ngap[k]) if not [it for it in sched[k][g] if it[0] in 'eca']]
            free = (free + [g for g in range(ngap[k]) if len([it for it in sched[k][g] if it[0] in 'eca']) == 1 and sched[k][g][0][0] != 'e' and g not in free])
            free = sorted(free)
            free = [g for g in free if g >= 2][:5]
            if len(free) < 5: free.append(free[-1])
            for n, dt in enumerate(range(4, 8)):
                extra.setdefault(free[n], []).append(('x', wr_x(qd, dt)))
            assert free[4] >= 7
            extra.setdefault(free[4], []).append(('x', wr_l(qd)))
        unit(t, k, scal, drop=('d', 'k') + (('v',) if k >= bar_k else ()), extra=extra, qk=(k < 4))
    ul = 5 * NT - 1
    pol = (" " + cfg.o_pol) if cfg.o_pol else ""
    def combine(qt, rx, pa):
        for dt in range(4):
            o = V_OOWN + (qt * 4 + dt) * 4
            for h in range(2):
                a(f"v_pk_add_f32 v[{o+2*h}:{o+2*h+1}], v[{o+2*h}:{o+2*h+1}], v[{rx[dt]+2*h}:{rx[dt]+2*h+1}]")
        for dt in range(4):
            o = V_OOWN + (qt * 4 + dt) * 4
            for h in range(2):
                a(f"v_pk_mul_f32 v[{o+2*h}:{o+2*h+1}], v[{o+2*h}:{o+2*h+1}], v[{pa}:{pa+1}] op_sel_hi:[1,0]")
        for e in range(2):
            ox = V_OOWN + (qt * 4 + 2 * e) * 4
            oy = ox + 4
            d = rx[2 * e]
            a(f"v_cvt_pk_bf16_f32 v{d}, v{ox}, v{ox+1}")
            a(f"v_cvt_pk_bf16_f32 v{d+1}, v{ox+2}, v{ox+3}")
            a(f"v_cvt_pk_bf16_f32 v{d+2}, v{oy}, v{oy+1}")
            a(f"v_cvt_pk_bf16_f32 v{d+3}, v{oy+2}, v{oy+3}")
        a("s_nop 0")
        for e in range(2):
            d = rx[2 * e]
            a(f"v_permlane16_swap_b32 v{d}, v{d+2}")
            a(f"v_permlane16_swap_b32 v{d+1}, v{d+3}")
        for e in range(2):
            d = rx[2 * e]
            if 'nostore' not in cfg.dbg: a(f"buffer_store_dwordx4 v[{d}:{d+3}], v{V_OOFF}, s[{SRD_O}:{SRD_O+3}], s{S_QT+qt} offen offset:{e*64}{pol}")
    def rd_x(qt, dt, b): return f"ds_read_b128 v[{b}:{b+3}], v{V_XP} offset:{(qt*4 + dt) * 1024}"
    def rd_l(qt, r): return f"ds_read_b32 v{r}, v{V_XLP} offset:{qt*256}"
    RX = [[V_NEGM + 4 * d for d in range(4)], [V_S + 4 * d for d in range(4)], [V_NEGM + 16, V_T + 4, V_T + 8, V_T + 12]]
    LO = [V_T + 16, V_T + 17, V_T + 18]
    LQ = [V_T + 19, V_T + 20, V_T + 21, V_T + 0, V_T + 1]
    PA = [V_P, V_P + 2, V_LS + 2]
    ds = DS()
    a("s_waitcnt lgkmcnt(0)")
    a("s_barrier")
    todo = [(f"lo{q}", rd_l(q, LO[q])) for q in range(3)]
    todo += [(f"rx{q}", rd_x(q, d, RX[q][d])) for q in range(3) for d in range(4)]
    todo += [("w3", wr_x(3, 4 + d)) for d in range(4)]
    last = [mf_pv(1, ul % 2, 4, dt) for dt in range(8)] + ([mf_l(ul % 2, 4)] if 4 in ones_qt else [])
    for m in last:
        a(m)
        for _ in range(2):
            if todo: n, txt = todo.pop(0); ds.issue(n, txt)
    if cfg.stamps:
        a("s_memrealtime s[70:71]"); a("s_memtime s[76:77]")
        if cfg.stamps: a("s_waitcnt lgkmcnt(0)")
    for q in range(3): a(f"v_accvgpr_read_b32 v{LQ[q]}, a{A_L + q*4}")
    while todo: n, txt = todo.pop(0); ds.issue(n, txt)
    ds.wait(("lo0", "lo1", "lo2"))
    for q in range(3): a(f"v_add_f32 v{LQ[q]}, v{LQ[q]}, v{LO[q]}")
    for q in range(3): a(f"v_rcp_f32 v{PA[q]}, v{LQ[q]}")
    a("s_nop 1")
    for dt in range(4, 8): ds.issue("w4", wr_x(4, dt))
    for q in (3, 4):
        if q in ones_qt: a(f"v_accvgpr_read_b32 v{LQ[q]}, a{A_L + q*4}")
        else: a(f"v_add_f32 v{LQ[q]}, v{V_LS+2*q}, v{V_LS+2*q+1}")
    adds = [q for q in (3, 4) if q not in ones_qt]
    for swap in ("v_permlane16_swap_b32", "v_permlane32_swap_b32"):
        if not adds: break
        for n, q in enumerate(adds): a(f"v_mov_b32 v{V_T+2+n}, v{LQ[q]}")
        a("s_nop 1")
        for n, q in enumerate(adds): a(f"{swap} v{LQ[q]}, v{V_T+2+n}")
        for n, q in enumerate(adds): a(f"v_add_f32 v{LQ[q]}, v{LQ[q]}, v{V_T+2+n}")
    for q in (3, 4): ds.issue("wl", f"ds_write_b32 v{V_XL}, v{LQ[q]} offset:{q*256}")
    a(f"s_mov_b64 s[{S_BAD}:{S_BAD+1}], 0")
    for q in range(5):
        a(f"v_cmp_nge_f32 vcc, s{S_HI}, v{LQ[q]}")
        a(f"s_or_b64 s[{S_BAD}:{S_BAD+1}], s[{S_BAD}:{S_BAD+1}], vcc")
    if cfg.force_slow: a(f"s_mov_b64 s[{S_BAD}:{S_BAD+1}], -1")
    a(f"s_cmp_lg_u64 s[{S_BAD}:{S_BAD+1}], 0")
    a(f"s_cselect_b32 s{S_T}, 1, 0")
    a(f"s_lshl_b32 s{S_T+2}, s{S_W}, 2")
    a(f"s_add_u32 s{S_T+2}, s{S_T+2}, {X_F}")
    a(f"v_mov_b32 v{V_T+2}, s{S_T+2}")
    a(f"v_mov_b32 v{V_T+3}, s{S_T}")
    ds.issue("wf", f"ds_write_b32 v{V_T+2}, v{V_T+3}")
    stamp(3, 88)
    for q in range(3):
        ds.wait((f"rx{q}",))
        combine(q, RX[q], PA[q])
    stamp(3, 90)
    a("s_waitcnt lgkmcnt(0)")
    a("s_barrier")
    if cfg.stamps == 3: a("s_memrealtime s[92:93]"); a("s_waitcnt lgkmcnt(0)")
    fl = V_T + 4
    a(f"v_mov_b32 v{V_T+8}, {X_F}")
    a(f"ds_read_b128 v[{fl}:{fl+3}], v{V_T+8}")
    a(rd_l(3, V_T + 9)); a(rd_l(4, V_T + 10))
    a("s_waitcnt lgkmcnt(2)")
    a(f"v_or_b32 v{fl}, v{fl}, v{fl+1}")
    a(f"v_or_b32 v{fl+2}, v{fl+2}, v{fl+3}")
    a(f"v_or_b32 v{fl}, v{fl}, v{fl+2}")
    a("s_nop 0")
    a(f"v_readfirstlane_b32 s{S_T}, v{fl}")
    a("s_nop 3")
    a(f"s_cmp_lg_u32 s{S_T}, 0")
    a("s_cbranch_scc1 L_slow")
    RQ = lambda q: [V_Q + (q * 4 + d) * 4 for d in range(4)]
    for q in (3, 4):
        for d in range(4): a(rd_x(q, d, RQ(q)[d]))
    a("s_waitcnt lgkmcnt(8)")
    a(f"v_add_f32 v{LQ[3]}, v{LQ[3]}, v{V_T+9}")
    a(f"v_add_f32 v{LQ[4]}, v{LQ[4]}, v{V_T+10}")
    a(f"v_rcp_f32 v{V_T+12}, v{LQ[3]}")
    a(f"v_rcp_f32 v{V_T+14}, v{LQ[4]}")
    stamp(3, 94)
    a("s_waitcnt lgkmcnt(4)")
    combine(3, RQ(3), V_T + 12)
    a("s_waitcnt lgkmcnt(0)")
    combine(4, RQ(4), V_T + 14)
    if cfg.stamps:
        stamp(3, 96)
        a("s_waitcnt vmcnt(0)")
        a("s_memrealtime s[72:73]")
        a("s_waitcnt lgkmcnt(0)")
        a("s_mov_b32 s80, s64"); a("s_and_b32 s81, s65, 0xffff")
        a(f"s_mov_b32 s82, {256 if cfg.stamps == 2 else 0x100000}"); a("s_mov_b32 s83, 0x20000")
        a("s_lshl_b32 s84, s2, 2"); a(f"s_add_u32 s84, s84, s{S_W}"); a("s_lshl_b32 s84, s84, 6")
        a("s_sub_u32 s76, s76, s74")
        stl = (66, 68, 70, 72, 76, 88, 90, 92, 94, 96, 98)
        if cfg.stamps == 2: a("s_not_b32 s100, s66")
        for k, sr in enumerate(stl): a(f"v_mov_b32 v{V_T+k}, s{sr}")
        a(f"v_mov_b32 v{V_T+15}, s84")
        a(f"v_cmp_eq_u32 vcc, 0, v{V_LANE}")
        a("s_and_saveexec_b64 s[86:87], vcc")
        for k in range(len(stl)):
            a(f"buffer_store_dword v{V_T+k}, v{V_T+15}, s[80:83], 0 offen offset:{4*k}")
        a("s_waitcnt vmcnt(0)")
    a("L_done:")
    a("s_endpgm")

    a("L_slow:")
    a("s_waitcnt vmcnt(0) lgkmcnt(0)")
    zero_acc()
    for qt in range(5):
        if qt not in ones_qt:
            for r in range(4): a(f"v_accvgpr_write_b32 a{A_L+qt*4+r}, 0")
    for qt in range(5):
        for r in range(4): a(f"v_mov_b32 v{V_NEGM + qt*4 + r}, 0x7f800000")
    a(f"s_lshl_b32 s{S_TOFF}, s{S_W}, 12")
    a(f"s_mov_b32 s{S_TOFF2}, s{S_TOFF}")
    a(f"s_mov_b32 s{SRD_K+2}, 524288"); a(f"s_mov_b32 s{SRD_V+2}, 524288")
    a(f"s_mov_b32 s{S_CNT}, {NT}")
    a("L_slow_loop:")
    a("s_waitcnt lgkmcnt(0)")
    a("s_barrier")
    issue_part('k', 0); issue_part('v', 0)
    a(f"s_add_u32 s{S_TOFF}, s{S_TOFF}, 16384")
    a(f"s_add_u32 s{S_TOFF2}, s{S_TOFF2}, 16384")
    a("s_waitcnt vmcnt(0)")
    a("s_barrier")
    for kt in range(2):
        for s in range(4): a(rd_k(0, 0, kt, s))
    a("s_waitcnt lgkmcnt(0)")
    for dt in range(8):
        for kk in range(2): a(rd_v(0, 0, dt, kk))
        if dt == 3: a("s_waitcnt lgkmcnt(0)")
    a("s_waitcnt lgkmcnt(0)")
    T = V_T
    for qt in range(5):
        for kt in range(2):
            for s in range(4): a(mf_qk(0, 0, qt, kt, s, cinit="0"))
        a("s_nop 7"); a("s_nop 1")
        S0 = V_S
        a(f"v_max3_f32 v{T}, v{S0}, v{S0+1}, v{S0+2}")
        a(f"v_max3_f32 v{T}, v{T}, v{S0+3}, v{S0+4}")
        a(f"v_max3_f32 v{T}, v{T}, v{S0+5}, v{S0+6}")
        a(f"v_max_f32 v{T}, v{T}, v{S0+7}")
        a(f"v_mov_b32 v{T+1}, v{T}")
        a("s_nop 1")
        a(f"v_permlane16_swap_b32 v{T}, v{T+1}")
        a("s_nop 1")
        a(f"v_max_f32 v{T}, v{T}, v{T+1}")
        a(f"v_mov_b32 v{T+1}, v{T}")
        a("s_nop 1")
        a(f"v_permlane32_swap_b32 v{T}, v{T+1}")
        a("s_nop 1")
        a(f"v_max_f32 v{T}, v{T}, v{T+1}")
        nm = V_NEGM + qt * 4
        a(f"v_sub_f32 v{T}, 0, v{T}")
        a(f"v_min_f32 v{T}, v{T}, v{nm}")
        a(f"v_sub_f32 v{T+2}, v{T}, v{nm}")
        a(f"v_exp_f32 v{T+2}, v{T+2}")
        for r in range(8): a(f"v_add_f32 v{S0+r}, v{S0+r}, v{T}")
        for r in range(8): a(f"v_exp_f32 v{S0+r}, v{S0+r}")
        for r in range(4): a(f"v_mov_b32 v{nm+r}, v{T}")
        for r in range(4): a(f"v_cvt_pk_bf16_f32 {vPr(0, r)}, v{S0+2*r}, v{S0+2*r+1}")
        def scale_unit(qt, f):
            for dt in range(4):
                o = V_OOWN + (qt * 4 + dt) * 4
                for r in range(4): a(f"v_mul_f32 v{o+r}, v{o+r}, v{f}")
            for k in range(16): a(f"v_accvgpr_read_b32 v{T+4+k}, a{A_OSND + qt*16 + k}")
            a(f"v_accvgpr_read_b32 v{T+3}, a{A_L + qt*4}")
            for k in range(16): a(f"v_mul_f32 v{T+4+k}, v{T+4+k}, v{f}")
            a(f"v_mul_f32 v{T+3}, v{T+3}, v{f}")
            for k in range(16): a(f"v_accvgpr_write_b32 a{A_OSND + qt*16 + k}, v{T+4+k}")
            a(f"v_accvgpr_write_b32 a{A_L + qt*4}, v{T+3}")
        scale_unit(qt, T + 2)
        a("s_nop 1")
        for dt in range(8): a(mf_pv(0, 0, qt, dt))
        a(mf_l(0, qt))
    a(f"s_sub_u32 s{S_CNT}, s{S_CNT}, 1")
    a(f"s_cmp_lg_u32 s{S_CNT}, 0")
    a("s_cbranch_scc1 L_slow_loop")
    a("s_nop 7")
    a("s_waitcnt lgkmcnt(0)")
    a("s_barrier")
    a(f"s_mul_i32 s{S_T+1}, s{S_W}, 1280")
    a(f"s_add_u32 s{S_T+1}, s{S_T+1}, {X_L}")
    a(f"v_lshlrev_b32 v{T}, 2, v{V_LANE}")
    a(f"v_add_u32 v{T}, s{S_T+1}, v{T}")
    for qt in range(5): a(f"ds_write_b32 v{T}, v{V_NEGM + qt*4} offset:{qt*256}")
    a("s_waitcnt lgkmcnt(0)")
    a("s_barrier")
    a(f"s_xor_b32 s{S_T+1}, s{S_W}, 1")
    a(f"s_mul_i32 s{S_T+2}, s{S_T+1}, 1280")
    a(f"s_add_u32 s{S_T+2}, s{S_T+2}, {X_L}")
    a(f"v_lshlrev_b32 v{T}, 2, v{V_LANE}")
    a(f"v_add_u32 v{T}, s{S_T+2}, v{T}")
    for qt in range(5): a(f"ds_read_b32 v{V_S+qt}, v{T} offset:{qt*256}")
    a("s_waitcnt lgkmcnt(0)")
    a("s_barrier")
    for qt in range(5):
        nm = V_NEGM + qt * 4
        a(f"v_min_f32 v{V_S+8}, v{nm}, v{V_S+qt}")
        a(f"v_sub_f32 v{V_S+8}, v{V_S+8}, v{nm}")
        a(f"v_exp_f32 v{V_S+8}, v{V_S+8}")
        a("s_nop 0")
        scale_unit(qt, V_S + 8)
    a("s_nop 1")
    for qt in range(5):
        for dt in range(4, 8): a(wr_x(qt, dt))
        a(wr_l(qt))
    for qt in range(5): a(f"v_accvgpr_read_b32 v{V_S+qt}, a{A_L + qt*4}")
    a("s_waitcnt lgkmcnt(0)")
    a("s_barrier")
    for qt in range(5): a(rd_l(qt, V_S + 8 + qt))
    for qt in range(5):
        for d in range(4): a(rd_x(qt, d, RQ(qt)[d]))
    a("s_waitcnt lgkmcnt(0)")
    for qt in range(5): a(f"v_add_f32 v{V_S+qt}, v{V_S+qt}, v{V_S+8+qt}")
    for qt in range(5): a(f"v_rcp_f32 v{V_T+2*qt}, v{V_S+qt}")
    a("s_nop 0")
    for qt in range(5): combine(qt, RQ(qt), V_T + 2 * qt)
    a("s_endpgm")
    return L

HEADER = """; Kernarg layout for this problem (48 bytes, ptrs only, base s[0:1]):
; @launch grid=(256,1,1) block=(256,1,1) lds={lds}
.amdgcn_target "amdgcn-amd-amdhsa--gfx950"
.text
.globl {name}
.p2align 8
.type {name},@function
{name}:
"""
FOOTER = """
.section .rodata,"a"
.p2align 6
.amdhsa_kernel {name}
  .amdhsa_next_free_vgpr 512
  .amdhsa_next_free_sgpr 102
  .amdhsa_accum_offset 256
  .amdhsa_group_segment_fixed_size 0
  .amdhsa_kernarg_size 48
  .amdhsa_user_sgpr_count 2
  .amdhsa_user_sgpr_kernarg_segment_ptr 1
  .amdhsa_system_sgpr_workgroup_id_x 1
  .amdhsa_float_denorm_mode_32 3
.end_amdhsa_kernel
"""
META = """.amdgpu_metadata
---
amdhsa.version: [1, 2]
amdhsa.kernels:
  - .name: {name}
    .symbol: {name}.kd
    .kernarg_segment_size: 48
    .kernarg_segment_align: 8
    .group_segment_fixed_size: 0
    .private_segment_fixed_size: 0
    .wavefront_size: 64
    .sgpr_count: 102
    .vgpr_count: 512
    .max_flat_workgroup_size: 256
    .args:
      - {{.name: kernargs, .size: 48, .offset: 0, .value_kind: by_value}}
...
.end_amdgpu_metadata
"""

def render(cfg, meta=False):
    body = gen(cfg)
    out = HEADER.format(name=NAME, lds=cfg.lds)
    for l in body:
        out += (l if l.endswith(":") or l.startswith(".") else "    " + l) + "\n"
    out += FOOTER.format(name=NAME)
    if meta: out += META.format(name=NAME)
    return out

if __name__ == "__main__":
    import argparse, subprocess
    ap = argparse.ArgumentParser()
    ap.add_argument("-o", default="k.s")
    ap.add_argument("--kv", default="nt"); ap.add_argument("--q", default=""); ap.add_argument("--op", default="sc0 sc1")
    ap.add_argument("--stamps", type=int, default=0); ap.add_argument("--slow", action="store_true")
    ap.add_argument("--meta", action="store_true")
    ap.add_argument("--dbg", default="")
    ap.add_argument("-D", type=int, default=4)
    ap.add_argument("--nones", type=int, default=5)
    ap.add_argument("--sched", default="a")
    ap.add_argument("--alt", action="store_true")
    ap.add_argument("--rot", type=int, default=0)
    ap.add_argument("--qmode", default="dma"); ap.add_argument("--late", default="0355"); ap.add_argument("--nqf", type=int, default=3)
    args = ap.parse_args()
    cfg = Cfg(); cfg.kv_pol = args.kv; cfg.q_pol = args.q; cfg.o_pol = args.op
    cfg.dbg = tuple(x for x in args.dbg.split(",") if x)
    cfg.stamps = args.stamps; cfg.force_slow = args.slow; cfg.D = args.D; cfg.nones = args.nones; cfg.qmode = args.qmode; cfg.sched = args.sched; cfg.alt = args.alt; cfg.rot = args.rot; cfg.late = args.late; cfg.nq_first = args.nqf
    cfg.lds = 155648 if cfg.qmode == 'dma' else 131072
    open(args.o, "w").write(render(cfg, args.meta))
    if args.meta:
        r = subprocess.run(["clang", "-x", "assembler", "-target", "amdgcn-amd-amdhsa", "-mcpu=gfx950",
                            args.o, "-o", args.o[:-2] + ".co"], capture_output=True, text=True)
        if r.returncode: print(r.stderr[:4000]); sys.exit(1)
```
